```python
import torch

def _softmax(x, axis=-1):
    return torch.softmax(x, dim=axis)
def _gelu(x):
    return torch.nn.functional.gelu(x, approximate="tanh")
def _silu(x):
    return torch.nn.functional.silu(x)
def _sigmoid(x):
    return torch.sigmoid(x)
def _layernorm(x, axis=-1, eps=1e-5):
    m = x.mean(dim=axis, keepdim=True)
    v = x.var(dim=axis, keepdim=True, unbiased=False)
    return (x - m) / torch.sqrt(v + eps)
def _scatter_add(tgt, idx, src, axis=0):
    return tgt.clone().index_add_(axis, idx, src)
def _segment_sum(src, seg, n):
    out = torch.zeros((n,) + src.shape[1:], dtype=src.dtype)
    return out.index_add_(0, seg, src)
def _pad(x, pw):
    flat = tuple(v for pair in reversed(pw) for v in pair)
    return torch.nn.functional.pad(x, flat)

kernel_name = 'recurrent_scan__sliding_block_cached__mixer_channel_mlp__decode'

def setup_inputs():

    _w = (lambda a: (lambda t: t.to(torch.bfloat16) if t.is_floating_point() else t)(torch.as_tensor(a)))
    def _A_setup():
        B, Sq, D = 4, 1, 512
        Hq, Hkv, Sk, Dh = 32, 8, 4096, 128
        assert Hq % Hkv == 0, (Hq, Hkv)
        return {
            "x": _w((lambda *s: torch.randn(*s, dtype=torch.bfloat16) * 0.1)(B, Sq, D)),
            "k_cache": _w((lambda *s: torch.randn(*s, dtype=torch.bfloat16) * 0.8)(B, Hkv, Sk, Dh)),
            "v_cache": _w((lambda *s: torch.randn(*s, dtype=torch.bfloat16) * 3.2)(B, Hkv, Sk, Dh)),
            "wq": _w((lambda *s: torch.randn(*s, dtype=torch.bfloat16) * 0.8)(D, Hq * Dh) * (D ** -0.5)),
            "wo": _w((lambda *s: torch.randn(*s, dtype=torch.bfloat16) * 3.2)(Hq * Dh, D) * ((Hq * Dh) ** -0.5)),
        }
    _A_in = _A_setup()

    def _B_setup():
        B, S, D, F = 4, 1, 512, 1792
        return {
            "x": _w((lambda *s: torch.randn(*s, dtype=torch.bfloat16) * 0.1)(B, S, D)),
            "w1": _w((lambda *s: torch.randn(*s, dtype=torch.bfloat16) * 3.2)(D, F) * (D ** -0.5)),
            "b1": _w((lambda *s: torch.randn(*s, dtype=torch.bfloat16) * 3.2)(F)),
            "w2": _w((lambda *s: torch.randn(*s, dtype=torch.bfloat16) * 3.2)(F, D) * (F ** -0.5)),
            "b2": _w((lambda *s: torch.randn(*s, dtype=torch.bfloat16) * 3.2)(D)),
        }
    _B_in = _B_setup()

    return {
        "A_x": _A_in["x"],
        "A_k_cache": _A_in["k_cache"],
        "A_v_cache": _A_in["v_cache"],
        "A_wq": _A_in["wq"],
        "A_wo": _A_in["wo"],
        "B_x": _B_in["x"],
        "B_w1": _B_in["w1"],
        "B_b1": _B_in["b1"],
        "B_w2": _B_in["w2"],
        "B_b2": _B_in["b2"],
    }

def reference(A_x, A_k_cache, A_v_cache, A_wq, A_wo, B_x, B_w1, B_b1, B_w2, B_b2):
    def _A_ref(x, k_cache, v_cache, wq, wo):
        B, Sq, D = x.shape
        Hq, Dh = 32, 128
        Hkv, Sk = k_cache.shape[1], k_cache.shape[2]
        W = min(4096, max(256, Sk // 4))
        rep = Hq // Hkv
        q = (lambda x, *d: x.permute(*d))((x @ wq).reshape(B, Sq, Hq, Dh), 0, 2, 1, 3)
        k = (lambda x, n, axis: torch.repeat_interleave(x, n, dim=axis))(k_cache[:, :, Sk - W:, :], rep, axis=1)
        v = (lambda x, n, axis: torch.repeat_interleave(x, n, dim=axis))(v_cache[:, :, Sk - W:, :], rep, axis=1)
        scores = torch.einsum("bhqd,bhkd->bhqk", q, k) * (Dh ** -0.5)
        p = _softmax(scores, axis=-1)
        o = torch.einsum("bhqk,bhkd->bhqd", p, v)
        return (lambda x, *d: x.permute(*d))(o, 0, 2, 1, 3).reshape(B, Sq, Hq * Dh) @ wo

    def _B_ref(x, w1, b1, w2, b2):
        y = _layernorm(x, axis=-1)
        h = _gelu(torch.einsum("bsd,df->bsf", y, w1) + b1)
        return torch.einsum("bsf,fd->bsd", h, w2) + b2

    x = A_x
    xn = _layernorm(x, axis=-1)
    s = _A_ref(xn, A_k_cache, A_v_cache, A_wq, A_wo)
    g = _silu(_B_ref(xn, B_w1, B_b1, B_w2, B_b2))
    return x + s * g
```

```python
import re

TRANS = ('v_exp_f32', 'v_log_f32', 'v_rcp_f32', 'v_rsq_f32', 'v_sqrt_f32', 'v_sin_f32', 'v_cos_f32')

def regs_of(op):
    op = op.strip()
    op = re.sub(r'^-', '', op); op = re.sub(r'^abs\((.*)\)$', r'\1', op); op = op.strip('|')
    m = re.fullmatch(r'([vsa])(\d+)', op)
    if m: return {(m.group(1), int(m.group(2)))}
    m = re.fullmatch(r'([vsa])\[(\d+):(\d+)\]', op)
    if m: return {(m.group(1), k) for k in range(int(m.group(2)), int(m.group(3)) + 1)}
    if op == 'vcc': return {('s', 106), ('s', 107)}
    if op == 'vcc_lo': return {('s', 106)}
    if op == 'vcc_hi': return {('s', 107)}
    if op == 'exec': return {('s', 126), ('s', 127)}
    return set()

class Ins:
    def __init__(self, text):
        self.text = text
        t = text.split(';')[0].strip()
        self.is_label = t.endswith(':')
        self.is_dir = t.startswith('.') or t == ''
        self.mn = t.split()[0] if t else ''
        rest = t[len(self.mn):].strip()
        parts = [p.strip() for p in rest.split(',')] if rest else []
        ops = []; depth = 0; cur = ''
        for ch in rest:
            if ch == '[': depth += 1
            if ch == ']': depth -= 1
            if ch == ',' and depth == 0: ops.append(cur.strip()); cur = ''
            else: cur += ch
        if cur.strip(): ops.append(cur.strip())
        self.mods = ''
        if ops:
            last = ops[-1].split(None, 1)
            ops[-1] = last[0]
            if len(last) > 1: self.mods = last[1]
        self.ops = ops
        mn = self.mn
        self.mfma = mn.startswith('v_mfma')
        self.valu = mn.startswith('v_') and not self.mfma
        self.dpp = self.valu and bool(re.search(r'quad_perm|row_|wave_', self.mods))
        self.perml = mn.startswith('v_permlane')
        self.trans = any(mn.startswith(x) for x in TRANS)
        self.rdlane = mn.startswith('v_readlane') or mn.startswith('v_readfirstlane')
        self.vmem = mn.startswith('global_') or mn.startswith('buffer_') or mn.startswith('flat_')
        self.ds = mn.startswith('ds_')
        self.wr = set(); self.rd = set()
        R = [regs_of(o) for o in ops]
        if self.valu or self.mfma:
            self.wr = set(R[0]); srcs = R[1:]
            if mn.startswith('v_add_co') or mn.startswith('v_addc_co') or mn.startswith('v_sub_co'):
                self.wr |= R[1]; srcs = R[2:]
            for s in srcs: self.rd |= s
            if self.perml: self.wr |= R[1]; self.rd |= R[0]
            if mn.startswith('v_fmac') or mn.startswith('v_dot2c') or mn.startswith('v_writelane') or self.dpp: self.rd |= R[0]
            if mn.startswith('v_cndmask') and len(ops) == 3: self.rd |= regs_of('vcc')
            self.srcC = R[3] if self.mfma else set()
            self.srcAB = (R[1] | R[2]) if self.mfma else set()
        elif self.vmem or self.ds:
            isload = ('_load' in mn) or mn.startswith('ds_read') or ('_rtn' in mn) or mn.startswith('ds_bpermute') or ('atomic' in mn and 'sc0' in self.mods)
            if isload:
                self.wr = set(R[0])
                for s in R[1:]: self.rd |= s
            else:
                for s in R: self.rd |= s
            self.wide_store = self.vmem and ('store_dwordx4' in mn or 'store_dwordx3' in mn)
            if self.wide_store: self.sdata = R[1] if mn.startswith('global_') else R[0]
        self.states = 1
        if mn == 's_nop': self.states = int(ops[0], 0) + 1

def add_waits(lines):
    out = []; hist = []
    for text in lines:
        ins = Ins(text)
        if ins.is_label or ins.is_dir:
            out.append(text); continue
        need = 0; dist = 0
        for p in reversed(hist):
            if dist >= 24: break
            req = 0
            vw = {r for r in p.wr if r[0] in 'va'}
            sw = {r for r in p.wr if r[0] == 's'}
            if p.valu:
                if ins.dpp and (vw & ins.rd): req = max(req, 2)
                if ins.perml and (vw & ins.rd): req = max(req, 2)
                if ins.mfma and (vw & ins.rd): req = max(req, 2)
                if ins.rdlane and (vw & ins.rd): req = max(req, 1)
                if p.trans and ins.valu and not ins.trans and (vw & ins.rd): req = max(req, 1)
                if p.trans and (ins.vmem or ins.ds) and (vw & ins.rd): req = max(req, 1)
                if ins.valu and (sw & ins.rd): req = max(req, 4 if ins.rdlane or ins.mn.startswith('v_writelane') else 2)
                if ins.vmem and (sw & ins.rd): req = max(req, 5)
                if 'sdwa' in p.mn and ins.valu and (vw & (ins.rd | ins.wr)): req = max(req, 1)
                if p.mn.startswith('v_dot2') and (ins.valu or ins.mfma or ins.vmem or ins.ds) and (vw & (ins.rd | ins.wr)):
                    same_acc = ins.mn == p.mn and not (vw & (regs_of(ins.ops[1]) | regs_of(ins.ops[2])))
                    if not same_acc: req = max(req, 3)
            if p.mfma:
                passes = 8 if '32x32' in p.mn else 4
                full, ovl, war = (12, 10, 7) if passes == 8 else (8, 6, 3)
                if ins.mfma:
                    if p.wr & ins.srcAB: req = max(req, full)
                    if (p.wr & ins.srcC) and p.wr != ins.srcC: req = max(req, ovl)
                elif ins.valu or ins.vmem or ins.ds:
                    if p.wr & (ins.rd | ins.wr): req = max(req, full)
                    if ins.valu and (p.srcC & ins.wr): req = max(req, war)
            if (p.vmem) and getattr(p, 'wide_store', False) and (p.sdata & ins.wr): req = max(req, 2)
            need = max(need, req - dist)
            dist += p.states
        while need > 0:
            k = min(need, 16)
            n = Ins('s_nop %d' % (k - 1)); out.append('s_nop %d' % (k - 1)); hist.append(n); need -= k
        out.append(text); hist.append(ins)
    return out
```

```python
import sys, os
sys.path.insert(0, os.path.dirname(os.path.abspath(__file__)))
from asmlib import add_waits

NAME = 'recurrent_scan__sliding_block_cached__mixer_channel_mlp__decode'
OPT = dict(pol='nt', stamps=0, kpat=3, vfirst=1, qdelay=0, pretouch=1, codepf=1, outsc1=0)
for a in sys.argv[2:]:
    k, v = a.split('='); OPT[k] = int(v) if v.lstrip('-').isdigit() else v
POL = OPT['pol'].replace('-', '').replace('+', ' ')
ST = OPT['stamps']

QP, HP, OP, BP, SP = 0x080000, 0x100000, 0x180000, 0x200000, 0x280000
XN, XS = 0, 1088
YL = XN + 4 * XS
QL, QS = YL + 4 * XS, 272
HL, HS = QL + 4 * QS, 144
OL, OS = HL + 4 * HS, 272
AP = (OL + 4 * OS + 15) // 16 * 16
ML = AP + 8192
CNT = ML + 128
C_XN, C_Y, C_QPUB, C_Q, C_H, C_AT, C_O, C_SPUB, C_TAG = [CNT + 4 * k for k in range(9)]
LDS_BYTES = CNT + 64

L = []
def A(s):
    for x in s.split('\n'):
        x = x.strip()
        if x: L.append(x)
uid = [0]
def lab(p):
    uid[0] += 1; return 'L_%s%d' % (p, uid[0])

sX, sK, sV, sWQ, sWO, sW1, sB1 = 's[4:5]', 's[6:7]', 's[8:9]', 's[10:11]', 's[12:13]', 's[16:17]', 's[18:19]'
sW2, sB2, sOUT, sWS = 's[20:21]', 's[22:23]', 's[24:25]', 's[28:29]'
XCD, IHI, ILO, FG, WV, TAG, CAP = 's30', 's31', 's32', 's33', 's34', 's35', 's36'
SELLO, SELHI = 's40', 's41'
nst = [0]
def stamp(k):
    if ST: A('s_memtime s[%d:%d]' % (62 + 2 * k, 63 + 2 * k))

def vr(b, n): return 'v[%d:%d]' % (b, b + n - 1)

def lds_signal(cnt):
    A('s_mov_b64 exec, 1\nds_add_u32 v2, v1 offset:%d\ns_mov_b64 exec, -1' % cnt)

def lds_wait(cnt, n, extra='', sleep=0):
    l = lab('w'); d = lab('d')
    A('%s:' % l)
    A('ds_read_b32 v7, v2 offset:%d' % cnt)
    if extra: A(extra)
    A('s_waitcnt lgkmcnt(0)\nv_readfirstlane_b32 s37, v7\ns_cmp_ge_u32 s37, %d\ns_cbranch_scc1 %s' % (n, d))
    if sleep: A('s_sleep %d' % sleep)
    A('s_sub_u32 %s, %s, 1\ns_cbranch_scc0 %s\n%s:' % (CAP, CAP, l, d))

def transpose(src, dst):
    for u in range(8):
        k = u >> 1
        for j in range(4):
            A('v_perm_b32 v%d, v%d, v%d, %s' % (dst + 4 * u + j, src + 4 * (2 * j + 1) + k, src + 4 * (2 * j) + k, SELHI if u & 1 else SELLO))

def unit_mfma(D, Aop, O, first):
    for u in range(8):
        A('v_mfma_f32_16x16x32_bf16 %s, %s, %s, %s' % (vr(D + 4 * u, 4), vr(Aop, 4), vr(O + 4 * u, 4), '0' if first else vr(D + 4 * u, 4)))

def unit_fold(D, T):
    for k in range(4):
        A('v_add_f32_dpp v%d, v%d, v%d row_ror:8 row_mask:0xf bank_mask:0x3' % (T + 2 * k, D + 4 * k + 1, D + 4 * k))
    for k in range(4):
        A('v_add_f32_dpp v%d, v%d, v%d row_ror:8 row_mask:0xf bank_mask:0xc' % (T + 2 * k, D + 4 * (k + 4), D + 4 * (k + 4) + 1))

def set_tags(T):
    for k in range(4): A('v_mov_b32 v%d, %s' % (T + 2 * k + 1, TAG))

def publish(T, vaddr):
    A('global_store_dwordx4 %s, %s, %s sc1' % (vaddr, vr(T, 4), sWS))
    A('global_store_dwordx4 %s, %s, %s offset:1024 sc1' % (vaddr, vr(T + 4, 4), sWS))

def xrow(op, v, t):
    for sw in ('v_permlane16_swap_b32', 'v_permlane32_swap_b32'):
        A('v_mov_b32 v%d, v%d\n%s v%d, v%d\n%s v%d, v%d, v%d' % (t, v, sw, v, t, op, v, v, t))

def wave_sum(v, t):
    for r in (8, 4, 2, 1):
        A('v_add_f32_dpp v%d, v%d, v%d row_ror:%d row_mask:0xf bank_mask:0xf' % (v, v, v, r))
    xrow('v_add_f32', v, t)

def rbf(d, s):
    A('v_cvt_pk_bf16_f32 v%d, v%d, v%d\nv_lshlrev_b32 v%d, 16, v%d' % (d, s, s, d, d))

def unpack(dst, src, n):
    for k in range(n):
        A('v_lshlrev_b32 v%d, 16, v%d\nv_and_b32 v%d, 0xffff0000, v%d' % (dst + 2 * k, src + k, dst + 2 * k + 1, src + k))

def layernorm(P):
    F, Dd = 12, 20
    unpack(F, P, 4)
    A('v_add_f32 v28, v12, v13\nv_add_f32 v29, v14, v15\nv_add_f32 v30, v16, v17\nv_add_f32 v31, v18, v19')
    A('v_add_f32 v28, v28, v29\nv_add_f32 v30, v30, v31\nv_add_f32 v28, v28, v30')
    wave_sum(28, 29)
    A('v_mul_f32 v28, 0x3b000000, v28')
    for k in range(8): A('v_sub_f32 v%d, v%d, v28' % (Dd + k, F + k))
    A('v_mul_f32 v30, v20, v20\nv_mul_f32 v31, v21, v21')
    for k in range(2, 8): A('v_fmac_f32 v%d, v%d, v%d' % (30 + (k & 1), Dd + k, Dd + k))
    A('v_add_f32 v30, v30, v31')
    rbf(28, 28)
    wave_sum(30, 29)
    A('v_mul_f32 v30, 0x3b000000, v30')
    for k in range(8): A('v_sub_f32 v%d, v%d, v28' % (Dd + k, F + k))
    rbf(30, 30)
    A('v_add_f32 v30, 0x3727c5ac, v30')
    rbf(30, 30)
    A('v_sqrt_f32 v30, v30')
    for k in range(4): A('v_cvt_pk_bf16_f32 v%d, v%d, v%d' % (P + k, Dd + 2 * k, Dd + 2 * k + 1))
    rbf(30, 30)
    A('v_rcp_f32 v30, v30')
    unpack(F, P, 4)
    for k in range(8): A('v_mul_f32 v%d, v%d, v30' % (F + k, F + k))
    for k in range(4): A('v_cvt_pk_bf16_f32 v%d, v%d, v%d' % (P + k, F + 2 * k, F + 2 * k + 1))

def tagcheck(regs, t, retry):
    n = 0
    for k in range(0, len(regs), 2):
        A('v_bitop3_b32 v%d, v%d, v%d, %s bitop3:0x7e' % (t + n, regs[k], regs[k + 1], TAG)); n += 1
    cur = list(range(t, t + n))
    while len(cur) > 1:
        if len(cur) >= 3: A('v_or3_b32 v%d, v%d, v%d, v%d' % (cur[0], cur[0], cur[1], cur[2])); cur = [cur[0]] + cur[3:]
        else: A('v_or_b32 v%d, v%d, v%d' % (cur[0], cur[0], cur[1])); cur = [cur[0]]
    ok = lab('ok')
    A('v_cmp_ne_u32 vcc, 0, v%d\ns_cbranch_vccz %s\ns_sub_u32 %s, %s, 1\ns_cbranch_scc0 %s\n%s:' % (cur[0], ok, CAP, CAP, retry, ok))

def aop_addr(v, base, stride):
    A('v_bfe_u32 v5, v0, 2, 2\nv_mul_u32_u24 v5, %d, v5' % stride)
    A('v_lshrrev_b32 v6, 4, v0\nv_lshl_add_u32 v5, v6, 5, v5\nv_and_b32 v6, 1, v0\nv_lshl_add_u32 v%d, v6, 4, v5' % v)
    if base is not None: A('v_add_u32 v%d, %s, v%d' % (v, base, v))

def colpos(v):
    A('v_and_b32 v5, 7, v0\nv_lshlrev_b32 v5, 3, v5\nv_bfe_u32 v6, v0, 3, 1\nv_lshl_add_u32 v5, v6, 2, v5\nv_bfe_u32 v6, v0, 4, 1\nv_lshl_add_u32 v%d, v6, 1, v5' % v)

A('s_cmp_ge_u32 s2, 256\ns_cbranch_scc1 L_end')
if ST: A('s_memrealtime s[60:61]'); stamp(0)
A('''s_load_dwordx16 s[4:19], s[0:1], 0
s_load_dwordx8 s[20:27], s[0:1], 64
s_load_dwordx2 s[28:29], s[0:1], 96
v_lshrrev_b32 v1, 6, v0
v_and_b32 v0, 63, v0
v_readfirstlane_b32 s3, v1
s_and_b32 s30, s2, 7
s_lshr_b32 s31, s2, 6
s_bfe_u32 s32, s2, 0x30003
s_lshl_b32 s33, s31, 3
s_add_u32 s33, s33, s30
s_and_b32 s34, s3, 3
s_mov_b32 s36, 0x40000
s_mov_b32 s40, 0x05040100
s_mov_b32 s41, 0x07060302
v_mov_b32 v1, 1
v_mov_b32 v2, 0
s_cmp_ge_u32 s3, 8
s_cbranch_scc1 L_C
s_cmp_ge_u32 s3, 4
s_cbranch_scc1 L_B''')

A('v_lshlrev_b32 v3, 4, v0')
A('s_lshl_b32 s37, s34, 10\nv_add_u32 v4, s37, v3')
A('v_lshrrev_b32 v5, 3, v0\nv_and_b32 v6, 7, v0\nv_lshlrev_b32 v6, 4, v6')
A('s_cmp_eq_u32 s3, 0\ns_cbranch_scc0 L_A_n0')
A('''s_lshl_b32 s37, s31, 20
s_lshl_b32 s38, s30, 10
s_add_u32 s37, s37, s38
s_lshl_b32 s38, s32, 7
s_add_u32 s37, s37, s38
v_lshl_add_u32 v7, v5, 16, v6
v_add_u32 v7, s37, v7
v_mov_b32 v8, 0
v_lshlrev_b32 v9, 2, v0
s_mov_b64 exec, 0xffff
ds_write_b32 v9, v8 offset:%d
s_mov_b64 exec, -1
s_waitcnt lgkmcnt(0)''' % CNT)
stamp(1)
A('global_load_dwordx4 v[8:11], v4, %s' % sX)
for t in range(16):
    A('global_load_dwordx4 %s, v7, %s %s' % (vr(32 + 4 * t, 4), sWQ, POL))
    if t < 15: A('v_add_u32 v7, %d, v7' % (8192 if t != 7 else 8192 + 56 * 8192))
A('s_load_dword s35, %s, 0' % sWS)
A('s_barrier')
A('s_waitcnt vmcnt(16)')
A('s_branch L_A_ln')
A('L_A_n0:')
A('s_cmp_eq_u32 s3, 1\ns_cbranch_scc0 L_A_n1')
A('''s_lshl_b32 s37, s32, 6
v_lshl_add_u32 v7, v5, 3, s37
v_mul_u32_u24 v7, 3584, v7
s_lshl_b32 s37, s33, 7
v_add3_u32 v7, v7, v6, s37
s_waitcnt lgkmcnt(0)''')
stamp(1)
A('global_load_dwordx4 v[8:11], v4, %s' % sX)
A('s_cmp_ge_u32 s33, 28\ns_cbranch_scc1 L_A_n1b')
for t in range(8):
    A('global_load_dwordx4 %s, v7, %s offset:%d %s' % (vr(32 + 4 * t, 4), sW1, (t & 1) * 3584, POL))
    if t & 1 and t < 7: A('v_add_u32 v7, 7168, v7')
A('s_load_dword s35, %s, 0' % sWS)
A('s_barrier')
A('s_waitcnt vmcnt(8)')
A('s_branch L_A_ln')
A('L_A_n1:')
A('s_waitcnt lgkmcnt(0)')
stamp(1)
A('global_load_dwordx4 v[8:11], v4, %s' % sX)
if OPT['codepf']:
    A('s_cmp_eq_u32 s3, 2\ns_cbranch_scc0 L_A_n1b')
    A('s_getpc_b64 s[38:39]\nv_lshlrev_b32 v7, 7, v0\nglobal_load_dword v32, v7, s[38:39]')
A('L_A_n1b:')
A('s_load_dword s35, %s, 0' % sWS)
A('s_barrier')
A('s_waitcnt vmcnt(0)')
A('L_A_ln:')
stamp(2)
layernorm(8)
A('s_mul_i32 s37, s34, %d\nv_add_u32 v4, s37, v3' % XS)
A('ds_write_b128 v4, v[8:11] offset:%d' % XN)
lds_signal(C_XN)
layernorm(8)
A('ds_write_b128 v4, v[8:11] offset:%d' % YL)
lds_signal(C_Y)
A('s_waitcnt lgkmcnt(0)\ns_mul_i32 s35, s35, 0x9E3779B1\ns_add_u32 s35, s35, 0x7F4A7C15')
stamp(3)
A('s_cmp_eq_u32 s3, 0\ns_cbranch_scc0 L_A_q_done')
A('s_lshl_b32 s37, s31, 8')
aop_addr(4, 's37', XS)
set_tags(16)
A('''s_lshl_b32 s37, s30, 3
s_add_u32 s37, s37, s32
s_lshl_b32 s37, s37, 2
s_add_u32 s37, s37, s31
s_lshl_b32 s37, s37, 11
s_add_u32 s37, s37, %d
v_add_u32 v24, s37, v3''' % QP)
lds_wait(C_XN, 4, 'ds_read_b128 v[8:11], v4 offset:%d\nds_read_b128 v[12:15], v4 offset:%d' % (XN, XN + 128))
A('s_waitcnt vmcnt(8)')
transpose(32, 96)
unit_mfma(128, 8, 96, True)
A('s_waitcnt vmcnt(0)')
stamp(4)
transpose(64, 96)
unit_mfma(128, 12, 96, False)
unit_fold(128, 16)
publish(16, 'v24')
lds_signal(C_QPUB)
stamp(5)
A('s_branch L_A_gather')
A('L_A_q_done:')
A('s_cmp_eq_u32 s3, 1\ns_cbranch_scc0 L_A_n2')
A('s_cmp_ge_u32 s33, 28\ns_cbranch_scc1 L_A_gather')
A('s_lshl_b32 s37, s32, 7')
aop_addr(4, 's37', XS)
set_tags(16)
A('s_lshl_b32 s37, s33, 3\ns_add_u32 s37, s37, s32\ns_lshl_b32 s37, s37, 11\ns_add_u32 s37, s37, %d\nv_add_u32 v24, s37, v3' % HP)
lds_wait(C_Y, 4, 'ds_read_b128 v[8:11], v4 offset:%d' % YL)
A('s_waitcnt vmcnt(0)')
stamp(4)
transpose(32, 96)
unit_mfma(128, 8, 96, True)
unit_fold(128, 16)
publish(16, 'v24')
stamp(5)
A('s_branch L_A_gather')
A('L_A_n2:')
A('s_cmp_eq_u32 s3, 2\ns_cbranch_scc0 L_A_gather')
A('v_mov_b32 v8, s35\ns_mov_b64 exec, 1\nds_write_b32 v2, v8 offset:%d\ns_mov_b64 exec, -1' % C_TAG)
A('L_A_gather:')
colpos(24)
A('v_and_b32 v25, 15, v0\nv_lshlrev_b32 v25, 4, v25\nv_bfe_u32 v5, v0, 4, 1\nv_lshl_add_u32 v25, v5, 10, v25')
A('v_lshrrev_b32 v26, 5, v0\nv_lshl_add_u32 v25, v26, 13, v25')
A('''s_lshl_b32 s37, s30, 16
s_lshl_b32 s38, s34, 14
s_add_u32 s37, s37, s38
s_lshl_b32 s38, s31, 8
s_add_u32 s37, s37, s38
s_add_u32 s37, s37, %d
v_add_u32 v27, s37, v25''' % (QP + 4096))
A('v_lshl_add_u32 v28, v26, 6, v24\nv_lshlrev_b32 v28, 1, v28\ns_mul_i32 s37, s34, %d\nv_add_u32 v28, s37, v28' % QS)
A('s_min_u32 s37, s33, 27\ns_lshl_b32 s37, s37, 7\nv_lshl_add_u32 v29, v24, 1, s37\nglobal_load_dword v30, v29, %s' % sB1)
lds_wait(C_QPUB, 1, sleep=1)
if OPT['qdelay']: A('s_sleep %d' % OPT['qdelay'])
stamp(6)
A('L_A_qpoll:')
for rg in range(4): A('global_load_dwordx4 %s, v27, %s offset:%d sc1' % (vr(32 + 4 * rg, 4), sWS, rg * 2048 - 4096))
A('s_waitcnt vmcnt(0)')
tagcheck([33, 35, 37, 39, 41, 43, 45, 47], 8, 'L_A_qpoll')
A('v_add_f32 v32, v32, v36\nv_add_f32 v34, v34, v38\nv_add_f32 v40, v40, v44\nv_add_f32 v42, v42, v46\nv_add_f32 v32, v32, v40\nv_add_f32 v34, v34, v42')
A('v_cvt_pk_bf16_f32 v32, v32, v34\nds_write_b32 v28, v32 offset:%d' % QL)
lds_signal(C_Q)
stamp(7)
A('s_cmp_ge_u32 s33, 28\ns_cbranch_scc1 L_A_hdone')
A('''s_lshl_b32 s37, s33, 14
s_lshl_b32 s38, s34, 8
s_add_u32 s37, s37, s38
s_add_u32 s37, s37, %d
v_add_u32 v27, s37, v25''' % (HP + 4096))
A('s_mul_i32 s37, s34, %d\nv_lshl_add_u32 v28, v24, 1, s37' % HS)
A('L_A_hpoll:')
for s in range(4): A('global_load_dwordx4 %s, v27, %s offset:%d sc1' % (vr(32 + 4 * s, 4), sWS, s * 2048 - 4096))
A('s_waitcnt vmcnt(0)')
tagcheck([33, 35, 37, 39, 41, 43, 45, 47], 8, 'L_A_hpoll')
A('v_add_f32 v32, v32, v36\nv_add_f32 v34, v34, v38\nv_add_f32 v40, v40, v44\nv_add_f32 v42, v42, v46\nv_add_f32 v32, v32, v40\nv_add_f32 v34, v34, v42')
A('v_mov_b32 v33, v32\nv_mov_b32 v35, v34\nv_permlane32_swap_b32 v32, v33\nv_permlane32_swap_b32 v34, v35\nv_add_f32 v32, v32, v33\nv_add_f32 v34, v34, v35')
A('v_cvt_pk_bf16_f32 v32, v32, v34')
unpack(8, 32, 1); unpack(10, 30, 1)
A('v_add_f32 v8, v8, v10\nv_add_f32 v9, v9, v11\nv_cvt_pk_bf16_f32 v32, v8, v9')
unpack(8, 32, 1)
import struct, math
def fl(x): return '0x%08x' % struct.unpack('<I', struct.pack('<f', x))[0]
c1 = -2.0 * math.sqrt(2.0 / math.pi) * math.log2(math.e)
A('s_mov_b32 s37, %s\ns_mov_b32 s38, %s' % (fl(c1 * 0.044715), fl(c1)))
for k in (0, 1):
    A('v_mul_f32 v%d, v%d, v%d' % (10 + k, 8 + k, 8 + k))
for k in (0, 1):
    A('v_mov_b32 v%d, s38\nv_fmac_f32 v%d, s37, v%d\nv_mul_f32 v%d, v%d, v%d' % (12 + k, 12 + k, 10 + k, 12 + k, 12 + k, 8 + k))
for k in (0, 1): A('v_exp_f32 v%d, v%d' % (12 + k, 12 + k))
for k in (0, 1): A('v_add_f32 v%d, 1.0, v%d' % (12 + k, 12 + k))
for k in (0, 1): A('v_rcp_f32 v%d, v%d' % (12 + k, 12 + k))
for k in (0, 1): A('v_mul_f32 v%d, v%d, v%d' % (8 + k, 8 + k, 12 + k))
A('v_cvt_pk_bf16_f32 v32, v8, v9\nds_write_b32 v28, v32 offset:%d' % HL)
lds_signal(C_H)
A('L_A_hdone:')
stamp(8)
A('s_cmp_eq_u32 s3, 3\ns_cbranch_scc0 L_fin')
A('''s_lshl_b32 s37, s30, 2
s_add_u32 s37, s37, s31
s_and_b32 s38, s37, 1
s_lshr_b32 s39, s37, 1
s_lshl_b32 s42, s38, 10
s_lshl_b32 s43, s39, 6
s_add_u32 s42, s42, s43
v_and_b32 v8, 3, v0
v_lshl_add_u32 v9, v8, 4, s42
v_lshrrev_b32 v10, 2, v0
v_lshl_add_u32 v9, v10, 11, v9
s_lshl_b32 s42, s32, 16
s_add_u32 s42, s42, %d
v_add_u32 v24, s42, v9
v_add_u32 v25, 0x8000, v24
s_lshl_b32 s42, s32, 17
s_add_u32 s42, s42, %d
v_add_u32 v26, s42, v9
v_add_u32 v27, 0x8000, v26
v_add_u32 v28, 0x10000, v26
v_add_u32 v29, 0x18000, v26''' % (BP, SP))
A('''s_lshl_b32 s42, s32, 7
s_and_b32 s43, s39, 1
s_lshl_b32 s43, s43, 6
s_add_u32 s42, s42, s43
s_bfe_u32 s43, s39, 0x10001
s_lshl_b32 s43, s43, 3
s_add_u32 s42, s42, s43
s_lshl_b32 s43, s38, 2
s_add_u32 s42, s42, s43
v_lshl_add_u32 v30, v8, 4, s42
s_lshr_b32 s43, s39, 2
s_lshl_b32 s43, s43, 10
v_add_u32 v31, s43, v30
global_load_dword v20, v30, %s
global_load_dword v21, v31, %s''' % (sB2, sX))
if OPT['pretouch']: A('global_load_dword v22, v31, %s' % sOUT)
A('v_mov_b32 v36, 0\nv_mov_b32 v37, s35\nv_mov_b32 v38, 0\nv_mov_b32 v39, s35')
lds_wait(C_AT, 4, sleep=1)
stamp(9)
A('L_F_bpoll:')
A('global_load_dwordx4 v[32:35], v24, %s sc1' % sWS)
A('s_mov_b32 exec_hi, 0xffff\nglobal_load_dwordx4 v[36:39], v25, %s sc1\ns_mov_b32 exec_hi, -1' % sWS)
A('s_waitcnt vmcnt(0)')
tagcheck([33, 35, 37, 39], 8, 'L_F_bpoll')
stamp(10)
def red16(a, b):
    for r in (4, 8):
        for v in (a, b): A('v_add_f32_dpp v%d, v%d, v%d row_ror:%d row_mask:0xf bank_mask:0xf' % (v, v, v, r))
    for sw in ('v_permlane16_swap_b32', 'v_permlane32_swap_b32'):
        A('v_mov_b32 v%d, v%d\nv_mov_b32 v%d, v%d' % (a + 1, a, b + 1, b))
        A('%s v%d, v%d\n%s v%d, v%d' % (sw, a, a + 1, sw, b, b + 1))
        A('v_add_f32 v%d, v%d, v%d\nv_add_f32 v%d, v%d, v%d' % (a, a, a + 1, b, b, b + 1))
A('v_add_f32 v32, v32, v36\nv_add_f32 v34, v34, v38')
red16(32, 34)
A('v_cvt_pk_bf16_f32 v32, v32, v34')
unpack(8, 32, 1); unpack(10, 20, 1)
A('v_add_f32 v8, v8, v10\nv_add_f32 v9, v9, v11\nv_cvt_pk_bf16_f32 v32, v8, v9')
unpack(8, 32, 1)
for k in (0, 1): A('v_mul_f32 v%d, %s, v%d' % (12 + k, fl(-math.log2(math.e)), 8 + k))
for k in (0, 1): A('v_exp_f32 v%d, v%d' % (12 + k, 12 + k))
for k in (0, 1): A('v_add_f32 v%d, 1.0, v%d' % (12 + k, 12 + k))
for k in (0, 1): A('v_rcp_f32 v%d, v%d' % (12 + k, 12 + k))
for k in (0, 1): A('v_mul_f32 v%d, v%d, v%d' % (8 + k, 8 + k, 12 + k))
A('v_cvt_pk_bf16_f32 v32, v8, v9')
unpack(16, 32, 1)
unpack(18, 21, 1)
lds_wait(C_SPUB, 2)
A('L_F_spoll:')
for k in range(4): A('global_load_dwordx4 %s, v%d, %s sc1' % (vr(40 + 4 * k, 4), 26 + k, sWS))
A('s_waitcnt vmcnt(0)')
tagcheck([41, 43, 45, 47, 49, 51, 53, 55], 8, 'L_F_spoll')
stamp(11)
A('v_add_f32 v40, v40, v44\nv_add_f32 v42, v42, v46\nv_add_f32 v48, v48, v52\nv_add_f32 v50, v50, v54\nv_add_f32 v40, v40, v48\nv_add_f32 v42, v42, v50')
red16(40, 42)
A('v_cvt_pk_bf16_f32 v40, v40, v42')
unpack(8, 40, 1)
A('v_mul_f32 v8, v8, v16\nv_mul_f32 v9, v9, v17\nv_cvt_pk_bf16_f32 v40, v8, v9')
unpack(8, 40, 1)
A('v_add_f32 v8, v8, v18\nv_add_f32 v9, v9, v19\nv_cvt_pk_bf16_f32 v40, v8, v9')
A('s_mov_b64 exec, 15\nglobal_store_dword v31, v40, %s %s' % (sOUT, 'sc1' if OPT['outsc1'] else ''))
A('s_cmp_eq_u32 s2, 0\ns_cbranch_scc0 L_F_done')
A('s_mov_b64 exec, 1\nglobal_store_dword v2, v37, %s' % sWS)
A('L_F_done:\ns_mov_b64 exec, -1')
stamp(12)
A('s_branch L_fin')

A('L_B:')
A('''s_lshl_b32 s37, s33, 20
s_lshl_b32 s38, s32, 15
s_add_u32 s37, s37, s38
s_lshl_b32 s38, s34, 13
s_add_u32 s37, s37, s38
s_add_u32 s37, s37, %d''' % (3072 * 256 + 4096))
if OPT['kpat'] == 3:
    A('v_lshl_add_u32 v4, v0, 4, s37')
    A('v_bfe_u32 v5, v0, 2, 2\nv_lshrrev_b32 v6, 4, v0\nv_lshlrev_b32 v6, 6, v6\nv_lshl_add_u32 v5, v5, 8, v6\nv_and_b32 v6, 3, v0\nv_lshl_add_u32 v5, v6, 4, v5\nv_add_u32 v3, s37, v5')
    koff = [i * 1024 - 4096 for i in range(8)]; voff = koff
else:
    A('v_and_b32 v5, 15, v0\nv_lshrrev_b32 v6, 4, v0\nv_lshlrev_b32 v4, 4, v5\nv_lshl_add_u32 v4, v6, 9, v4\nv_add_u32 v4, s37, v4')
    A('v_lshrrev_b32 v5, 1, v5\nv_lshlrev_b32 v5, 8, v5\nv_lshl_add_u32 v5, v6, 5, v5\nv_and_b32 v6, 1, v0\nv_lshl_add_u32 v5, v6, 4, v5\nv_add_u32 v3, s37, v5')
    koff = [(i >> 1) * 2048 + (i & 1) * 128 - 4096 for i in range(8)]
    voff = [(i >> 1) * 2048 + (i & 1) * 256 - 4096 for i in range(8)]
A('s_waitcnt lgkmcnt(0)\ns_barrier')
stamp(1)
for i in range(8): A('global_load_dwordx4 %s, v3, %s offset:%d %s' % (vr(32 + 4 * i, 4), sK, koff[i], POL))
for i in range(8): A('global_load_dwordx4 %s, v4, %s offset:%d %s' % (vr(64 + 4 * i, 4), sV, voff[i], POL))
stamp(2)
if OPT['kpat'] == 3:
    A('v_bfe_u32 v5, v0, 2, 2\nv_mul_u32_u24 v5, %d, v5\nv_lshrrev_b32 v6, 4, v0\nv_lshl_add_u32 v5, v6, 6, v5\nv_and_b32 v6, 3, v0\nv_lshl_add_u32 v4, v6, 4, v5' % QS)
    qread = 'ds_read_b128 v[8:11], v4 offset:%d\nds_read_b32 v16, v2 offset:%d' % (QL, C_TAG)
else:
    aop_addr(4, None, QS)
    qread = 'ds_read_b128 v[8:11], v4 offset:%d\nds_read_b128 v[12:15], v4 offset:%d\nds_read_b32 v16, v2 offset:%d' % (QL, QL + 128, C_TAG)
A('v_mov_b32 v28, 0x3f803f80\nv_mov_b32 v29, v28\nv_mov_b32 v30, v28\nv_mov_b32 v31, v28')
CS = (128 ** -0.5) * math.log2(math.e)
A('s_mov_b32 s42, %s' % fl(CS))
if OPT['vfirst']:
    A('s_waitcnt vmcnt(0)'); stamp(3); transpose(64, 96)
lds_wait(C_Q, 4, qread)
stamp(4)
A('v_readfirstlane_b32 s35, v16')
if not OPT['vfirst']: A('s_waitcnt vmcnt(8)')
S = 16
if OPT['kpat'] == 3:
    for i in range(8): A('v_mfma_f32_16x16x32_bf16 %s, %s, v[8:11], 0' % (vr(128 + 4 * i, 4), vr(32 + 4 * i, 4)))
    for r in (1, 2, 3):
        for i in range(8):
            A('v_add_f32_dpp v%d, v%d, v%d quad_perm:[%d,%d,%d,%d] row_mask:0xf bank_mask:0xf' % (S + i, 128 + 4 * i + r, (128 + 4 * i) if r == 1 else S + i, r, r, r, r))
else:
    for t in range(2):
        for tau in range(4):
            A('v_mfma_f32_16x16x32_bf16 %s, %s, %s, %s' % (vr(128 + 4 * tau, 4), vr(32 + 4 * (2 * tau + t), 4), vr(8 + 4 * t, 4), '0' if t == 0 else vr(128 + 4 * tau, 4)))
    for i in range(8):
        A('v_add_f32_dpp v%d, v%d, v%d quad_perm:[1,1,3,3] row_mask:0xf bank_mask:0xf' % (S + i, 128 + 2 * i + 1, 128 + 2 * i))
A('v_max3_f32 v24, v16, v17, v18\nv_max3_f32 v25, v19, v20, v21\nv_max3_f32 v24, v24, v22, v23\nv_max_f32 v24, v24, v25')
xrow('v_max_f32', 24, 25)
A('v_mul_f32 v24, s42, v24')
for i in range(8): A('v_fma_f32 v%d, v%d, s42, -v24' % (S + i, S + i))
for i in range(8): A('v_exp_f32 v%d, v%d' % (S + i, S + i))
for k in range(4): A('v_cvt_pk_bf16_f32 v%d, v%d, v%d' % (8 + k, S + 2 * k, S + 2 * k + 1))
if not OPT['vfirst']:
    A('s_waitcnt vmcnt(0)'); stamp(3); transpose(64, 96)
A('v_mfma_f32_16x16x32_bf16 v[12:15], v[8:11], v[28:31], 0')
unit_mfma(128, 8, 96, True)
A('s_lshl_b32 s37, s34, 11\nv_lshl_add_u32 v4, v0, 4, s37')
A('v_lshrrev_b32 v5, 4, v0\nv_lshlrev_b32 v5, 5, v5\ns_lshl_b32 s37, s34, 3\nv_add_u32 v5, s37, v5')
A('v_mov_b32 v25, v12')
for u in range(8): A('v_mov_b32 v%d, v%d' % (16 + u, 128 + 4 * u))
A('ds_write_b128 v4, v[16:19] offset:%d\nds_write_b128 v4, v[20:23] offset:%d' % (AP, AP + 1024))
A('s_mov_b32 exec_lo, 0x00100001\ns_mov_b32 exec_hi, 0x10000100\nds_write_b64 v5, v[24:25] offset:%d' % ML)
lds_signal(C_AT)
stamp(5)
A('v_and_b32 v5, 15, v0\nv_lshlrev_b32 v5, 4, v5\nv_bfe_u32 v6, v0, 4, 1\nv_lshl_add_u32 v4, v6, 10, v5\ns_lshl_b32 s37, s34, 8\nv_add_u32 v4, s37, v4')
A('s_lshl_b32 s37, s34, 5\nv_mov_b32 v5, s37')
A('''s_lshl_b32 s37, s30, 2
s_add_u32 s37, s37, s34
s_lshl_b32 s37, s37, 5
s_lshr_b32 s38, s2, 3
s_add_u32 s37, s37, s38
s_lshl_b32 s37, s37, 9
s_add_u32 s37, s37, %d
v_and_b32 v6, 31, v0
v_lshl_add_u32 v3, v6, 4, s37
v_mov_b32 v59, s35''' % OP)
rd = 'ds_read_b128 v[8:11], v5 offset:%d\nds_read_b128 v[12:15], v5 offset:%d\n' % (ML, ML + 16)
rd += '\n'.join('ds_read_b128 %s, v4 offset:%d' % (vr(32 + 4 * w, 4), AP + 2048 * w) for w in range(4))
lds_wait(C_AT, 4, rd)
A('v_max3_f32 v16, v8, v10, v12\nv_max_f32 v16, v16, v14')
for w in range(4): A('v_sub_f32 v%d, v%d, v16' % (8 + 2 * w, 8 + 2 * w))
for w in range(4): A('v_exp_f32 v%d, v%d' % (8 + 2 * w, 8 + 2 * w))
A('v_mul_f32 v17, v8, v9\nv_fmac_f32 v17, v10, v11\nv_fmac_f32 v17, v12, v13\nv_fmac_f32 v17, v14, v15')
for k in range(4): A('v_mul_f32 v%d, v8, v%d' % (20 + k, 32 + k))
A('v_rcp_f32 v18, v17\nv_log_f32 v58, v17')
for w in range(1, 4):
    for k in range(4): A('v_fmac_f32 v%d, v%d, v%d' % (20 + k, 8 + 2 * w, 32 + 4 * w + k))
A('v_add_f32 v58, v58, v16')
for k in range(4): A('v_mul_f32 v%d, v%d, v18' % (20 + k, 20 + k))
A('v_cvt_pk_bf16_f32 v56, v20, v21\nv_cvt_pk_bf16_f32 v57, v22, v23')
A('s_mov_b32 exec_hi, 0\nglobal_store_dwordx4 v3, v[56:59], %s sc1\ns_mov_b32 exec_hi, -1' % sWS)
stamp(6)
A('''s_lshl_b32 s37, s30, 2
s_add_u32 s37, s37, s31
s_lshl_b32 s37, s37, 14
s_lshl_b32 s38, s34, 12
s_add_u32 s37, s37, s38
s_add_u32 s37, s37, %d
v_and_b32 v5, 7, v0
v_lshrrev_b32 v6, 4, v0
v_lshl_add_u32 v5, v6, 3, v5
v_lshl_add_u32 v3, v5, 4, s37
v_bfe_u32 v6, v0, 3, 1
v_lshl_add_u32 v3, v6, 11, v3
v_and_b32 v6, 15, v5
v_lshlrev_b32 v6, 4, v6
v_lshrrev_b32 v5, 4, v5
v_lshl_add_u32 v4, v5, 3, v6
s_mul_i32 s37, s34, %d
v_add_u32 v4, s37, v4''' % (OP, OS))
A('L_B_opoll:')
for s in range(4): A('global_load_dwordx4 %s, v3, %s offset:%d sc1' % (vr(32 + 4 * s, 4), sWS, s * 512))
A('s_waitcnt vmcnt(0)')
tagcheck([35, 39, 43, 47], 8, 'L_B_opoll')
stamp(7)
A('v_max3_f32 v16, v34, v38, v42\nv_max_f32 v16, v16, v46')
for s in range(4): unpack(64 + 4 * s, 32 + 4 * s, 1)
A('v_max_f32_dpp v16, v16, v16 row_ror:8 row_mask:0xf bank_mask:0xf')
for s in range(4): A('v_sub_f32 v%d, v%d, v16' % (8 + s, 34 + 4 * s))
for s in range(4): A('v_exp_f32 v%d, v%d' % (8 + s, 8 + s))
for s in range(4): unpack(66 + 4 * s, 33 + 4 * s, 1)
A('v_add_f32 v17, v8, v9\nv_add_f32 v18, v10, v11\nv_add_f32 v17, v17, v18')
for k in range(4): A('v_mul_f32 v%d, v8, v%d' % (20 + k, 64 + k))
A('v_add_f32_dpp v17, v17, v17 row_ror:8 row_mask:0xf bank_mask:0xf')
for s in range(1, 4):
    for k in range(4): A('v_fmac_f32 v%d, v%d, v%d' % (20 + k, 8 + s, 64 + 4 * s + k))
    if s == 1: A('v_rcp_f32 v18, v17')
for k in range(4): A('v_add_f32_dpp v%d, v%d, v%d row_ror:8 row_mask:0xf bank_mask:0xf' % (20 + k, 20 + k, 20 + k))
for k in range(4): A('v_mul_f32 v%d, v%d, v18' % (20 + k, 20 + k))
A('v_cvt_pk_bf16_f32 v24, v20, v21\nv_cvt_pk_bf16_f32 v25, v22, v23')
A('ds_write_b64 v4, v[24:25] offset:%d' % OL)
lds_signal(C_O)
stamp(8)
A('s_branch L_fin')

A('L_C:')
A('v_lshrrev_b32 v5, 3, v0\nv_and_b32 v6, 7, v0\nv_lshlrev_b32 v6, 4, v6\nv_lshl_add_u32 v3, v5, 13, v6')
A('s_lshl_b32 s38, s32, 7\ns_add_u32 s38, s38, 4096')
A('s_cmp_eq_u32 s3, 8\ns_cbranch_scc0 L_C_wo')
A('s_lshl_b32 s37, s33, 16\ns_add_u32 s37, s37, s38\nv_add_u32 v3, s37, v3')
A('s_waitcnt lgkmcnt(0)\ns_barrier')
A('s_cmp_ge_u32 s33, 28\ns_cbranch_scc1 L_fin')
stamp(1)
for t in range(8): A('global_load_dwordx4 %s, v3, %s offset:%d %s' % (vr(32 + 4 * t, 4), sW2, t * 1024 - 4096, POL))
stamp(2)
aop_addr(4, None, HS)
A('s_lshl_b32 s37, s32, 5\ns_add_u32 s37, s37, s33\ns_lshl_b32 s37, s37, 11\ns_add_u32 s37, s37, %d\nv_lshl_add_u32 v24, v0, 4, s37' % BP)
A('s_waitcnt vmcnt(0)')
stamp(3)
transpose(32, 96)
lds_wait(C_H, 4, 'ds_read_b128 v[8:11], v4 offset:%d\nds_read_b32 v17, v2 offset:%d' % (HL, C_TAG), sleep=1)
stamp(4)
unit_mfma(128, 8, 96, True)
A('v_mov_b32 v19, v17\nv_mov_b32 v21, v17\nv_mov_b32 v23, v17')
unit_fold(128, 16)
publish(16, 'v24')
stamp(5)
A('s_branch L_fin')
A('L_C_wo:')
A('''s_sub_u32 s39, s3, 9
s_lshl_b32 s37, s30, 2
s_add_u32 s37, s37, s31
s_lshl_b32 s37, s37, 1
s_add_u32 s42, s37, s39
s_lshl_b32 s37, s42, 16
s_add_u32 s37, s37, s38
v_add_u32 v3, s37, v3''')
A('s_waitcnt lgkmcnt(0)\ns_barrier')
stamp(1)
for t in range(8): A('global_load_dwordx4 %s, v3, %s offset:%d %s' % (vr(32 + 4 * t, 4), sWO, t * 1024 - 4096, POL))
stamp(2)
A('s_lshl_b32 s37, s39, 7')
aop_addr(4, 's37', OS)
A('s_lshl_b32 s37, s32, 6\ns_add_u32 s37, s37, s42\ns_lshl_b32 s37, s37, 11\ns_add_u32 s37, s37, %d\nv_lshl_add_u32 v24, v0, 4, s37' % SP)
A('s_waitcnt vmcnt(0)')
stamp(3)
transpose(32, 96)
lds_wait(C_O, 4, 'ds_read_b128 v[8:11], v4 offset:%d\nds_read_b32 v17, v2 offset:%d' % (OL, C_TAG))
stamp(4)
unit_mfma(128, 8, 96, True)
A('v_mov_b32 v19, v17\nv_mov_b32 v21, v17\nv_mov_b32 v23, v17')
unit_fold(128, 16)
publish(16, 'v24')
lds_signal(C_SPUB)
stamp(5)
A('L_fin:')
if ST:
    A('s_waitcnt lgkmcnt(0) vmcnt(0)')
    stamp(13)
    A('s_waitcnt lgkmcnt(0)')
    A('s_mul_i32 s37, s2, 11\ns_add_u32 s37, s37, s3\ns_lshl_b32 s37, s37, 7\ns_add_u32 s37, s37, 0x8000000\nv_mov_b32 v10, s37')
    for j in range(15):
        A('v_mov_b32 v4, s%d\nv_mov_b32 v5, s%d\nglobal_store_dwordx2 v10, v[4:5], %s offset:%d\ns_nop 1' % (60 + 2 * j, 61 + 2 * j, sWS, j * 8))
A('L_end:\ns_endpgm')

body = add_waits(L)
HDR = open('cdna_kernels/%s.s.ref' % NAME).read().split('; Override launch')[0]
k = NAME + '_kernel'
txt = HDR + '; @launch grid=(256,1,1) block=(704,1,1) lds=%d\n' % LDS_BYTES
txt += '.amdgcn_target "amdgcn-amd-amdhsa--gfx950"\n.text\n.globl %s\n.p2align 8\n.type %s,@function\n%s:\n' % (k, k, k)
txt += '\n'.join(('' if x.endswith(':') else '    ') + x for x in body)
txt += '\n.fill 2112, 4, 0xbf800000\n' if OPT['codepf'] else '\n'
txt += '''.section .rodata,"a"
.p2align 6
.amdhsa_kernel %s
  .amdhsa_next_free_vgpr 160
  .amdhsa_next_free_sgpr 96
  .amdhsa_accum_offset 160
  .amdhsa_group_segment_fixed_size 0
  .amdhsa_kernarg_size 104
  .amdhsa_user_sgpr_count 2
  .amdhsa_user_sgpr_kernarg_segment_ptr 1
  .amdhsa_system_sgpr_workgroup_id_x 1
  .amdhsa_float_denorm_mode_32 3
.end_amdhsa_kernel
''' % k
open(sys.argv[1], 'w').write(txt)
```

```python
import sys, os
sys.path.insert(0, os.path.dirname(os.path.abspath(__file__)))
from asmlib import add_waits

NAME = 'recurrent_scan__sliding_block_cached__mixer_channel_mlp__decode'
OPT = dict(pol='nt', stamps=0, kpat=3, vfirst=1, qdelay=0, pretouch=1, codepf=1, outsc1=0)
for a in sys.argv[2:]:
    k, v = a.split('='); OPT[k] = int(v) if v.lstrip('-').isdigit() else v
POL = OPT['pol'].replace('-', '').replace('+', ' ')
ST = OPT['stamps']

QP, HP, OP, BP, SP = 0x080000, 0x100000, 0x180000, 0x200000, 0x280000
XN, XS = 0, 1088
YL = XN + 4 * XS
QL, QS = YL + 4 * XS, 272
HL, HS = QL + 4 * QS, 144
OL, OS = HL + 4 * HS, 272
AP = (OL + 4 * OS + 15) // 16 * 16
ML = AP + 8192
CNT = ML + 128
C_XN, C_Y, C_QPUB, C_Q, C_H, C_AT, C_O, C_SPUB, C_TAG = [CNT + 4 * k for k in range(9)]
LDS_BYTES = CNT + 64

L = []
def A(s):
    for x in s.split('\n'):
        x = x.strip()
        if x: L.append(x)
uid = [0]
def lab(p):
    uid[0] += 1; return 'L_%s%d' % (p, uid[0])

sX, sK, sV, sWQ, sWO, sW1, sB1 = 's[4:5]', 's[6:7]', 's[8:9]', 's[10:11]', 's[12:13]', 's[16:17]', 's[18:19]'
sW2, sB2, sOUT, sWS = 's[20:21]', 's[22:23]', 's[24:25]', 's[28:29]'
XCD, IHI, ILO, FG, WV, TAG, CAP = 's30', 's31', 's32', 's33', 's34', 's35', 's36'
SELLO, SELHI = 's40', 's41'
nst = [0]
def stamp(k):
    if ST: A('s_memtime s[%d:%d]' % (62 + 2 * k, 63 + 2 * k))

def vr(b, n): return 'v[%d:%d]' % (b, b + n - 1)

def lds_signal(cnt):
    A('s_mov_b64 exec, 1\nds_add_u32 v2, v1 offset:%d\ns_mov_b64 exec, -1' % cnt)

def lds_wait(cnt, n, extra='', sleep=0):
    l = lab('w'); d = lab('d')
    A('%s:' % l)
    A('ds_read_b32 v7, v2 offset:%d' % cnt)
    if extra: A(extra)
    A('s_waitcnt lgkmcnt(0)\nv_readfirstlane_b32 s37, v7\ns_cmp_ge_u32 s37, %d\ns_cbranch_scc1 %s' % (n, d))
    if sleep: A('s_sleep %d' % sleep)
    A('s_sub_u32 %s, %s, 1\ns_cbranch_scc0 %s\n%s:' % (CAP, CAP, l, d))

def transpose(src, dst):
    for u in range(8):
        k = u >> 1
        for j in range(4):
            A('v_perm_b32 v%d, v%d, v%d, %s' % (dst + 4 * u + j, src + 4 * (2 * j + 1) + k, src + 4 * (2 * j) + k, SELHI if u & 1 else SELLO))

def unit_mfma(D, Aop, O, first):
    for u in range(8):
        A('v_mfma_f32_16x16x32_bf16 %s, %s, %s, %s' % (vr(D + 4 * u, 4), vr(Aop, 4), vr(O + 4 * u, 4), '0' if first else vr(D + 4 * u, 4)))

def unit_fold(D, T):
    for k in range(4):
        A('v_add_f32_dpp v%d, v%d, v%d row_ror:8 row_mask:0xf bank_mask:0x3' % (T + 2 * k, D + 4 * k + 1, D + 4 * k))
    for k in range(4):
        A('v_add_f32_dpp v%d, v%d, v%d row_ror:8 row_mask:0xf bank_mask:0xc' % (T + 2 * k, D + 4 * (k + 4), D + 4 * (k + 4) + 1))

def set_tags(T):
    for k in range(4): A('v_mov_b32 v%d, %s' % (T + 2 * k + 1, TAG))

def publish(T, vaddr):
    A('global_store_dwordx4 %s, %s, %s sc1' % (vaddr, vr(T, 4), sWS))
    A('global_store_dwordx4 %s, %s, %s offset:1024 sc1' % (vaddr, vr(T + 4, 4), sWS))

def xrow(op, v, t):
    for sw in ('v_permlane16_swap_b32', 'v_permlane32_swap_b32'):
        A('v_mov_b32 v%d, v%d\n%s v%d, v%d\n%s v%d, v%d, v%d' % (t, v, sw, v, t, op, v, v, t))

def wave_sum(v, t):
    for r in (8, 4, 2, 1):
        A('v_add_f32_dpp v%d, v%d, v%d row_ror:%d row_mask:0xf bank_mask:0xf' % (v, v, v, r))
    xrow('v_add_f32', v, t)

def rbf(d, s):
    A('v_cvt_pk_bf16_f32 v%d, v%d, v%d\nv_lshlrev_b32 v%d, 16, v%d' % (d, s, s, d, d))

def unpack(dst, src, n):
    for k in range(n):
        A('v_lshlrev_b32 v%d, 16, v%d\nv_and_b32 v%d, 0xffff0000, v%d' % (dst + 2 * k, src + k, dst + 2 * k + 1, src + k))

def layernorm(P):
    F, Dd = 12, 20
    unpack(F, P, 4)
    A('v_add_f32 v28, v12, v13\nv_add_f32 v29, v14, v15\nv_add_f32 v30, v16, v17\nv_add_f32 v31, v18, v19')
    A('v_add_f32 v28, v28, v29\nv_add_f32 v30, v30, v31\nv_add_f32 v28, v28, v30')
    wave_sum(28, 29)
    A('v_mul_f32 v28, 0x3b000000, v28')
    for k in range(8): A('v_sub_f32 v%d, v%d, v28' % (Dd + k, F + k))
    A('v_mul_f32 v30, v20, v20\nv_mul_f32 v31, v21, v21')
    for k in range(2, 8): A('v_fmac_f32 v%d, v%d, v%d' % (30 + (k & 1), Dd + k, Dd + k))
    A('v_add_f32 v30, v30, v31')
    rbf(28, 28)
    wave_sum(30, 29)
    A('v_mul_f32 v30, 0x3b000000, v30')
    for k in range(8): A('v_sub_f32 v%d, v%d, v28' % (Dd + k, F + k))
    rbf(30, 30)
    A('v_add_f32 v30, 0x3727c5ac, v30')
    rbf(30, 30)
    A('v_sqrt_f32 v30, v30')
    for k in range(4): A('v_cvt_pk_bf16_f32 v%d, v%d, v%d' % (P + k, Dd + 2 * k, Dd + 2 * k + 1))
    rbf(30, 30)
    A('v_rcp_f32 v30, v30')
    unpack(F, P, 4)
    for k in range(8): A('v_mul_f32 v%d, v%d, v30' % (F + k, F + k))
    for k in range(4): A('v_cvt_pk_bf16_f32 v%d, v%d, v%d' % (P + k, F + 2 * k, F + 2 * k + 1))

def tagcheck(regs, t, retry):
    n = 0
    for k in range(0, len(regs), 2):
        A('v_bitop3_b32 v%d, v%d, v%d, %s bitop3:0x7e' % (t + n, regs[k], regs[k + 1], TAG)); n += 1
    cur = list(range(t, t + n))
    while len(cur) > 1:
        if len(cur) >= 3: A('v_or3_b32 v%d, v%d, v%d, v%d' % (cur[0], cur[0], cur[1], cur[2])); cur = [cur[0]] + cur[3:]
        else: A('v_or_b32 v%d, v%d, v%d' % (cur[0], cur[0], cur[1])); cur = [cur[0]]
    ok = lab('ok')
    A('v_cmp_ne_u32 vcc, 0, v%d\ns_cbranch_vccz %s\ns_sub_u32 %s, %s, 1\ns_cbranch_scc0 %s\n%s:' % (cur[0], ok, CAP, CAP, retry, ok))

def aop_addr(v, base, stride):
    A('v_bfe_u32 v5, v0, 2, 2\nv_mul_u32_u24 v5, %d, v5' % stride)
    A('v_lshrrev_b32 v6, 4, v0\nv_lshl_add_u32 v5, v6, 5, v5\nv_and_b32 v6, 1, v0\nv_lshl_add_u32 v%d, v6, 4, v5' % v)
    if base is not None: A('v_add_u32 v%d, %s, v%d' % (v, base, v))

def colpos(v):
    A('v_and_b32 v5, 7, v0\nv_lshlrev_b32 v5, 3, v5\nv_bfe_u32 v6, v0, 3, 1\nv_lshl_add_u32 v5, v6, 2, v5\nv_bfe_u32 v6, v0, 4, 1\nv_lshl_add_u32 v%d, v6, 1, v5' % v)

A('s_cmp_ge_u32 s2, 256\ns_cbranch_scc1 L_end')
if ST: A('s_memrealtime s[60:61]'); stamp(0)
A('''s_load_dwordx16 s[4:19], s[0:1], 0
s_load_dwordx8 s[20:27], s[0:1], 64
s_load_dwordx2 s[28:29], s[0:1], 96
v_lshrrev_b32 v1, 6, v0
v_and_b32 v0, 63, v0
v_readfirstlane_b32 s3, v1
s_and_b32 s30, s2, 7
s_lshr_b32 s31, s2, 6
s_bfe_u32 s32, s2, 0x30003
s_lshl_b32 s33, s31, 3
s_add_u32 s33, s33, s30
s_and_b32 s34, s3, 3
s_mov_b32 s36, 0x40000
s_mov_b32 s40, 0x05040100
s_mov_b32 s41, 0x07060302
v_mov_b32 v1, 1
v_mov_b32 v2, 0
s_cmp_ge_u32 s3, 8
s_cbranch_scc1 L_C
s_cmp_ge_u32 s3, 4
s_cbranch_scc1 L_B''')

A('v_lshlrev_b32 v3, 4, v0')
A('s_lshl_b32 s37, s34, 10\nv_add_u32 v4, s37, v3')
A('v_lshrrev_b32 v5, 3, v0\nv_and_b32 v6, 7, v0\nv_lshlrev_b32 v6, 4, v6')
A('s_cmp_eq_u32 s3, 0\ns_cbranch_scc0 L_A_n0')
A('''s_lshl_b32 s37, s31, 20
s_lshl_b32 s38, s30, 10
s_add_u32 s37, s37, s38
s_lshl_b32 s38, s32, 7
s_add_u32 s37, s37, s38
v_lshl_add_u32 v7, v5, 16, v6
v_add_u32 v7, s37, v7
v_mov_b32 v8, 0
v_lshlrev_b32 v9, 2, v0
s_mov_b64 exec, 0xffff
ds_write_b32 v9, v8 offset:%d
s_mov_b64 exec, -1
s_waitcnt lgkmcnt(0)''' % CNT)
stamp(1)
A('global_load_dwordx4 v[8:11], v4, %s' % sX)
for t in range(16):
    A('global_load_dwordx4 %s, v7, %s %s' % (vr(32 + 4 * t, 4), sWQ, POL))
    if t < 15: A('v_add_u32 v7, %d, v7' % (8192 if t != 7 else 8192 + 56 * 8192))
A('s_load_dword s35, %s, 0' % sWS)
A('s_barrier')
A('s_waitcnt vmcnt(16)')
A('s_branch L_A_ln')
A('L_A_n0:')
A('s_cmp_eq_u32 s3, 1\ns_cbranch_scc0 L_A_n1')
A('''s_lshl_b32 s37, s32, 6
v_lshl_add_u32 v7, v5, 3, s37
v_mul_u32_u24 v7, 3584, v7
s_lshl_b32 s37, s33, 7
v_add3_u32 v7, v7, v6, s37
s_waitcnt lgkmcnt(0)''')
stamp(1)
A('global_load_dwordx4 v[8:11], v4, %s' % sX)
A('s_cmp_ge_u32 s33, 28\ns_cbranch_scc1 L_A_n1b')
for t in range(8):
    A('global_load_dwordx4 %s, v7, %s offset:%d %s' % (vr(32 + 4 * t, 4), sW1, (t & 1) * 3584, POL))
    if t & 1 and t < 7: A('v_add_u32 v7, 7168, v7')
A('s_load_dword s35, %s, 0' % sWS)
A('s_barrier')
A('s_waitcnt vmcnt(8)')
A('s_branch L_A_ln')
A('L_A_n1:')
A('s_waitcnt lgkmcnt(0)')
stamp(1)
A('global_load_dwordx4 v[8:11], v4, %s' % sX)
if OPT['codepf']:
    A('s_cmp_eq_u32 s3, 2\ns_cbranch_scc0 L_A_n1b')
    A('s_getpc_b64 s[38:39]\nv_lshlrev_b32 v7, 7, v0\nglobal_load_dword v32, v7, s[38:39]')
A('L_A_n1b:')
A('s_load_dword s35, %s, 0' % sWS)
A('s_barrier')
A('s_waitcnt vmcnt(0)')
A('L_A_ln:')
stamp(2)
layernorm(8)
A('s_mul_i32 s37, s34, %d\nv_add_u32 v4, s37, v3' % XS)
A('ds_write_b128 v4, v[8:11] offset:%d' % XN)
lds_signal(C_XN)
layernorm(8)
A('ds_write_b128 v4, v[8:11] offset:%d' % YL)
lds_signal(C_Y)
A('s_waitcnt lgkmcnt(0)\ns_mul_i32 s35, s35, 0x9E3779B1\ns_add_u32 s35, s35, 0x7F4A7C15')
stamp(3)
A('s_cmp_eq_u32 s3, 0\ns_cbranch_scc0 L_A_q_done')
A('s_lshl_b32 s37, s31, 8')
aop_addr(4, 's37', XS)
set_tags(16)
A('''s_lshl_b32 s37, s30, 3
s_add_u32 s37, s37, s32
s_lshl_b32 s37, s37, 2
s_add_u32 s37, s37, s31
s_lshl_b32 s37, s37, 11
s_add_u32 s37, s37, %d
v_add_u32 v24, s37, v3''' % QP)
lds_wait(C_XN, 4, 'ds_read_b128 v[8:11], v4 offset:%d\nds_read_b128 v[12:15], v4 offset:%d' % (XN, XN + 128))
A('s_waitcnt vmcnt(8)')
transpose(32, 96)
unit_mfma(128, 8, 96, True)
A('s_waitcnt vmcnt(0)')
stamp(4)
transpose(64, 96)
unit_mfma(128, 12, 96, False)
unit_fold(128, 16)
publish(16, 'v24')
lds_signal(C_QPUB)
stamp(5)
A('s_branch L_A_gather')
A('L_A_q_done:')
A('s_cmp_eq_u32 s3, 1\ns_cbranch_scc0 L_A_n2')
A('s_cmp_ge_u32 s33, 28\ns_cbranch_scc1 L_A_gather')
A('s_lshl_b32 s37, s32, 7')
aop_addr(4, 's37', XS)
set_tags(16)
A('s_lshl_b32 s37, s33, 3\ns_add_u32 s37, s37, s32\ns_lshl_b32 s37, s37, 11\ns_add_u32 s37, s37, %d\nv_add_u32 v24, s37, v3' % HP)
lds_wait(C_Y, 4, 'ds_read_b128 v[8:11], v4 offset:%d' % YL)
A('s_waitcnt vmcnt(0)')
stamp(4)
transpose(32, 96)
unit_mfma(128, 8, 96, True)
unit_fold(128, 16)
publish(16, 'v24')
stamp(5)
A('s_branch L_A_gather')
A('L_A_n2:')
A('s_cmp_eq_u32 s3, 2\ns_cbranch_scc0 L_A_gather')
A('v_mov_b32 v8, s35\ns_mov_b64 exec, 1\nds_write_b32 v2, v8 offset:%d\ns_mov_b64 exec, -1' % C_TAG)
A('L_A_gather:')
colpos(24)
A('v_and_b32 v25, 15, v0\nv_lshlrev_b32 v25, 4, v25\nv_bfe_u32 v5, v0, 4, 1\nv_lshl_add_u32 v25, v5, 10, v25')
A('v_lshrrev_b32 v26, 5, v0\nv_lshl_add_u32 v25, v26, 13, v25')
A('''s_lshl_b32 s37, s30, 16
s_lshl_b32 s38, s34, 14
s_add_u32 s37, s37, s38
s_lshl_b32 s38, s31, 8
s_add_u32 s37, s37, s38
s_add_u32 s37, s37, %d
v_add_u32 v27, s37, v25''' % (QP + 4096))
A('v_lshl_add_u32 v28, v26, 6, v24\nv_lshlrev_b32 v28, 1, v28\ns_mul_i32 s37, s34, %d\nv_add_u32 v28, s37, v28' % QS)
A('s_min_u32 s37, s33, 27\ns_lshl_b32 s37, s37, 7\nv_lshl_add_u32 v29, v24, 1, s37\nglobal_load_dword v30, v29, %s' % sB1)
lds_wait(C_QPUB, 1, sleep=1)
if OPT['qdelay']: A('s_sleep %d' % OPT['qdelay'])
stamp(6)
A('L_A_qpoll:')
for rg in range(4): A('global_load_dwordx4 %s, v27, %s offset:%d sc1' % (vr(32 + 4 * rg, 4), sWS, rg * 2048 - 4096))
A('s_waitcnt vmcnt(0)')
tagcheck([33, 35, 37, 39, 41, 43, 45, 47], 8, 'L_A_qpoll')
A('v_add_f32 v32, v32, v36\nv_add_f32 v34, v34, v38\nv_add_f32 v40, v40, v44\nv_add_f32 v42, v42, v46\nv_add_f32 v32, v32, v40\nv_add_f32 v34, v34, v42')
A('v_cvt_pk_bf16_f32 v32, v32, v34\nds_write_b32 v28, v32 offset:%d' % QL)
lds_signal(C_Q)
stamp(7)
A('s_cmp_ge_u32 s33, 28\ns_cbranch_scc1 L_A_hdone')
A('''s_lshl_b32 s37, s33, 14
s_lshl_b32 s38, s34, 8
s_add_u32 s37, s37, s38
s_add_u32 s37, s37, %d
v_add_u32 v27, s37, v25''' % (HP + 4096))
A('s_mul_i32 s37, s34, %d\nv_lshl_add_u32 v28, v24, 1, s37' % HS)
A('L_A_hpoll:')
for s in range(4): A('global_load_dwordx4 %s, v27, %s offset:%d sc1' % (vr(32 + 4 * s, 4), sWS, s * 2048 - 4096))
A('s_waitcnt vmcnt(0)')
tagcheck([33, 35, 37, 39, 41, 43, 45, 47], 8, 'L_A_hpoll')
A('v_add_f32 v32, v32, v36\nv_add_f32 v34, v34, v38\nv_add_f32 v40, v40, v44\nv_add_f32 v42, v42, v46\nv_add_f32 v32, v32, v40\nv_add_f32 v34, v34, v42')
A('v_mov_b32 v33, v32\nv_mov_b32 v35, v34\nv_permlane32_swap_b32 v32, v33\nv_permlane32_swap_b32 v34, v35\nv_add_f32 v32, v32, v33\nv_add_f32 v34, v34, v35')
A('v_cvt_pk_bf16_f32 v32, v32, v34')
unpack(8, 32, 1); unpack(10, 30, 1)
A('v_add_f32 v8, v8, v10\nv_add_f32 v9, v9, v11\nv_cvt_pk_bf16_f32 v32, v8, v9')
unpack(8, 32, 1)
import struct, math
def fl(x): return '0x%08x' % struct.unpack('<I', struct.pack('<f', x))[0]
c1 = -2.0 * math.sqrt(2.0 / math.pi) * math.log2(math.e)
A('s_mov_b32 s37, %s\ns_mov_b32 s38, %s' % (fl(c1 * 0.044715), fl(c1)))
for k in (0, 1):
    A('v_mul_f32 v%d, v%d, v%d' % (10 + k, 8 + k, 8 + k))
for k in (0, 1):
    A('v_mov_b32 v%d, s38\nv_fmac_f32 v%d, s37, v%d\nv_mul_f32 v%d, v%d, v%d' % (12 + k, 12 + k, 10 + k, 12 + k, 12 + k, 8 + k))
for k in (0, 1): A('v_exp_f32 v%d, v%d' % (12 + k, 12 + k))
for k in (0, 1): A('v_add_f32 v%d, 1.0, v%d' % (12 + k, 12 + k))
for k in (0, 1): A('v_rcp_f32 v%d, v%d' % (12 + k, 12 + k))
for k in (0, 1): A('v_mul_f32 v%d, v%d, v%d' % (8 + k, 8 + k, 12 + k))
A('v_cvt_pk_bf16_f32 v32, v8, v9\nds_write_b32 v28, v32 offset:%d' % HL)
lds_signal(C_H)
A('L_A_hdone:')
stamp(8)
A('s_cmp_eq_u32 s3, 3\ns_cbranch_scc0 L_fin')
A('''s_lshl_b32 s37, s30, 2
s_add_u32 s37, s37, s31
s_and_b32 s38, s37, 1
s_lshr_b32 s39, s37, 1
s_lshl_b32 s42, s38, 10
s_lshl_b32 s43, s39, 6
s_add_u32 s42, s42, s43
v_and_b32 v8, 3, v0
v_lshl_add_u32 v9, v8, 4, s42
v_lshrrev_b32 v10, 2, v0
v_lshl_add_u32 v9, v10, 11, v9
s_lshl_b32 s42, s32, 16
s_add_u32 s42, s42, %d
v_add_u32 v24, s42, v9
v_add_u32 v25, 0x8000, v24
s_lshl_b32 s42, s32, 17
s_add_u32 s42, s42, %d
v_add_u32 v26, s42, v9
v_add_u32 v27, 0x8000, v26
v_add_u32 v28, 0x10000, v26
v_add_u32 v29, 0x18000, v26''' % (BP, SP))
A('''s_lshl_b32 s42, s32, 7
s_and_b32 s43, s39, 1
s_lshl_b32 s43, s43, 6
s_add_u32 s42, s42, s43
s_bfe_u32 s43, s39, 0x10001
s_lshl_b32 s43, s43, 3
s_add_u32 s42, s42, s43
s_lshl_b32 s43, s38, 2
s_add_u32 s42, s42, s43
v_lshl_add_u32 v30, v8, 4, s42
s_lshr_b32 s43, s39, 2
s_lshl_b32 s43, s43, 10
v_add_u32 v31, s43, v30
global_load_dword v20, v30, %s
global_load_dword v21, v31, %s''' % (sB2, sX))
if OPT['pretouch']: A('global_load_dword v22, v31, %s' % sOUT)
A('v_mov_b32 v36, 0\nv_mov_b32 v37, s35\nv_mov_b32 v38, 0\nv_mov_b32 v39, s35')
lds_wait(C_AT, 4, sleep=1)
stamp(9)
A('L_F_bpoll:')
A('global_load_dwordx4 v[32:35], v24, %s sc1' % sWS)
A('s_mov_b32 exec_hi, 0xffff\nglobal_load_dwordx4 v[36:39], v25, %s sc1\ns_mov_b32 exec_hi, -1' % sWS)
A('s_waitcnt vmcnt(0)')
tagcheck([33, 35, 37, 39], 8, 'L_F_bpoll')
stamp(10)
def red16(a, b):
    for r in (4, 8):
        for v in (a, b): A('v_add_f32_dpp v%d, v%d, v%d row_ror:%d row_mask:0xf bank_mask:0xf' % (v, v, v, r))
    for sw in ('v_permlane16_swap_b32', 'v_permlane32_swap_b32'):
        A('v_mov_b32 v%d, v%d\nv_mov_b32 v%d, v%d' % (a + 1, a, b + 1, b))
        A('%s v%d, v%d\n%s v%d, v%d' % (sw, a, a + 1, sw, b, b + 1))
        A('v_add_f32 v%d, v%d, v%d\nv_add_f32 v%d, v%d, v%d' % (a, a, a + 1, b, b, b + 1))
A('v_add_f32 v32, v32, v36\nv_add_f32 v34, v34, v38')
red16(32, 34)
A('v_cvt_pk_bf16_f32 v32, v32, v34')
unpack(8, 32, 1); unpack(10, 20, 1)
A('v_add_f32 v8, v8, v10\nv_add_f32 v9, v9, v11\nv_cvt_pk_bf16_f32 v32, v8, v9')
unpack(8, 32, 1)
for k in (0, 1): A('v_mul_f32 v%d, %s, v%d' % (12 + k, fl(-math.log2(math.e)), 8 + k))
for k in (0, 1): A('v_exp_f32 v%d, v%d' % (12 + k, 12 + k))
for k in (0, 1): A('v_add_f32 v%d, 1.0, v%d' % (12 + k, 12 + k))
for k in (0, 1): A('v_rcp_f32 v%d, v%d' % (12 + k, 12 + k))
for k in (0, 1): A('v_mul_f32 v%d, v%d, v%d' % (8 + k, 8 + k, 12 + k))
A('v_cvt_pk_bf16_f32 v32, v8, v9')
unpack(16, 32, 1)
unpack(18, 21, 1)
lds_wait(C_SPUB, 2)
A('L_F_spoll:')
for k in range(4): A('global_load_dwordx4 %s, v%d, %s sc1' % (vr(40 + 4 * k, 4), 26 + k, sWS))
A('s_waitcnt vmcnt(0)')
tagcheck([41, 43, 45, 47, 49, 51, 53, 55], 8, 'L_F_spoll')
stamp(11)
A('v_add_f32 v40, v40, v44\nv_add_f32 v42, v42, v46\nv_add_f32 v48, v48, v52\nv_add_f32 v50, v50, v54\nv_add_f32 v40, v40, v48\nv_add_f32 v42, v42, v50')
red16(40, 42)
A('v_cvt_pk_bf16_f32 v40, v40, v42')
unpack(8, 40, 1)
A('v_mul_f32 v8, v8, v16\nv_mul_f32 v9, v9, v17\nv_cvt_pk_bf16_f32 v40, v8, v9')
unpack(8, 40, 1)
A('v_add_f32 v8, v8, v18\nv_add_f32 v9, v9, v19\nv_cvt_pk_bf16_f32 v40, v8, v9')
A('s_mov_b64 exec, 15\nglobal_store_dword v31, v40, %s %s' % (sOUT, 'sc1' if OPT['outsc1'] else ''))
A('s_cmp_eq_u32 s2, 0\ns_cbranch_scc0 L_F_done')
A('s_mov_b64 exec, 1\nglobal_store_dword v2, v37, %s' % sWS)
A('L_F_done:\ns_mov_b64 exec, -1')
stamp(12)
A('s_branch L_fin')

A('L_B:')
A('''s_lshl_b32 s37, s33, 20
s_lshl_b32 s38, s32, 15
s_add_u32 s37, s37, s38
s_lshl_b32 s38, s34, 13
s_add_u32 s37, s37, s38
s_add_u32 s37, s37, %d''' % (3072 * 256 + 4096))
if OPT['kpat'] == 3:
    A('v_lshl_add_u32 v4, v0, 4, s37')
    A('v_bfe_u32 v5, v0, 2, 2\nv_lshrrev_b32 v6, 4, v0\nv_lshlrev_b32 v6, 6, v6\nv_lshl_add_u32 v5, v5, 8, v6\nv_and_b32 v6, 3, v0\nv_lshl_add_u32 v5, v6, 4, v5\nv_add_u32 v3, s37, v5')
    koff = [i * 1024 - 4096 for i in range(8)]; voff = koff
else:
    A('v_and_b32 v5, 15, v0\nv_lshrrev_b32 v6, 4, v0\nv_lshlrev_b32 v4, 4, v5\nv_lshl_add_u32 v4, v6, 9, v4\nv_add_u32 v4, s37, v4')
    A('v_lshrrev_b32 v5, 1, v5\nv_lshlrev_b32 v5, 8, v5\nv_lshl_add_u32 v5, v6, 5, v5\nv_and_b32 v6, 1, v0\nv_lshl_add_u32 v5, v6, 4, v5\nv_add_u32 v3, s37, v5')
    koff = [(i >> 1) * 2048 + (i & 1) * 128 - 4096 for i in range(8)]
    voff = [(i >> 1) * 2048 + (i & 1) * 256 - 4096 for i in range(8)]
A('s_waitcnt lgkmcnt(0)\ns_barrier')
stamp(1)
for i in range(8): A('global_load_dwordx4 %s, v3, %s offset:%d %s' % (vr(32 + 4 * i, 4), sK, koff[i], POL))
for i in range(8): A('global_load_dwordx4 %s, v4, %s offset:%d %s' % (vr(64 + 4 * i, 4), sV, voff[i], POL))
stamp(2)
if OPT['kpat'] == 3:
    A('v_bfe_u32 v5, v0, 2, 2\nv_mul_u32_u24 v5, %d, v5\nv_lshrrev_b32 v6, 4, v0\nv_lshl_add_u32 v5, v6, 6, v5\nv_and_b32 v6, 3, v0\nv_lshl_add_u32 v4, v6, 4, v5' % QS)
    qread = 'ds_read_b128 v[8:11], v4 offset:%d\nds_read_b32 v16, v2 offset:%d' % (QL, C_TAG)
else:
    aop_addr(4, None, QS)
    qread = 'ds_read_b128 v[8:11], v4 offset:%d\nds_read_b128 v[12:15], v4 offset:%d\nds_read_b32 v16, v2 offset:%d' % (QL, QL + 128, C_TAG)
A('v_mov_b32 v28, 0x3f803f80\nv_mov_b32 v29, v28\nv_mov_b32 v30, v28\nv_mov_b32 v31, v28')
CS = (128 ** -0.5) * math.log2(math.e)
A('s_mov_b32 s42, %s' % fl(CS))
if OPT['vfirst']:
    A('s_waitcnt vmcnt(0)'); stamp(3); transpose(64, 96)
lds_wait(C_Q, 4, qread)
stamp(4)
A('v_readfirstlane_b32 s35, v16')
if not OPT['vfirst']: A('s_waitcnt vmcnt(8)')
S = 16
if OPT['kpat'] == 3:
    for i in range(8): A('v_mfma_f32_16x16x32_bf16 %s, %s, v[8:11], 0' % (vr(128 + 4 * i, 4), vr(32 + 4 * i, 4)))
    for r in (1, 2, 3):
        for i in range(8):
            A('v_add_f32_dpp v%d, v%d, v%d quad_perm:[%d,%d,%d,%d] row_mask:0xf bank_mask:0xf' % (S + i, 128 + 4 * i + r, (128 + 4 * i) if r == 1 else S + i, r, r, r, r))
else:
    for t in range(2):
        for tau in range(4):
            A('v_mfma_f32_16x16x32_bf16 %s, %s, %s, %s' % (vr(128 + 4 * tau, 4), vr(32 + 4 * (2 * tau + t), 4), vr(8 + 4 * t, 4), '0' if t == 0 else vr(128 + 4 * tau, 4)))
    for i in range(8):
        A('v_add_f32_dpp v%d, v%d, v%d quad_perm:[1,1,3,3] row_mask:0xf bank_mask:0xf' % (S + i, 128 + 2 * i + 1, 128 + 2 * i))
A('v_max3_f32 v24, v16, v17, v18\nv_max3_f32 v25, v19, v20, v21\nv_max3_f32 v24, v24, v22, v23\nv_max_f32 v24, v24, v25')
xrow('v_max_f32', 24, 25)
A('v_mul_f32 v24, s42, v24')
for i in range(8): A('v_fma_f32 v%d, v%d, s42, -v24' % (S + i, S + i))
for i in range(8): A('v_exp_f32 v%d, v%d' % (S + i, S + i))
for k in range(4): A('v_cvt_pk_bf16_f32 v%d, v%d, v%d' % (8 + k, S + 2 * k, S + 2 * k + 1))
if not OPT['vfirst']:
    A('s_waitcnt vmcnt(0)'); stamp(3); transpose(64, 96)
A('v_mfma_f32_16x16x32_bf16 v[12:15], v[8:11], v[28:31], 0')
unit_mfma(128, 8, 96, True)
A('s_lshl_b32 s37, s34, 11\nv_lshl_add_u32 v4, v0, 4, s37')
A('v_lshrrev_b32 v5, 4, v0\nv_lshlrev_b32 v5, 5, v5\ns_lshl_b32 s37, s34, 3\nv_add_u32 v5, s37, v5')
A('v_mov_b32 v25, v12')
for u in range(8): A('v_mov_b32 v%d, v%d' % (16 + u, 128 + 4 * u))
A('ds_write_b128 v4, v[16:19] offset:%d\nds_write_b128 v4, v[20:23] offset:%d' % (AP, AP + 1024))
A('s_mov_b32 exec_lo, 0x00100001\ns_mov_b32 exec_hi, 0x10000100\nds_write_b64 v5, v[24:25] offset:%d' % ML)
lds_signal(C_AT)
stamp(5)
A('v_and_b32 v5, 15, v0\nv_lshlrev_b32 v5, 4, v5\nv_bfe_u32 v6, v0, 4, 1\nv_lshl_add_u32 v4, v6, 10, v5\ns_lshl_b32 s37, s34, 8\nv_add_u32 v4, s37, v4')
A('s_lshl_b32 s37, s34, 5\nv_mov_b32 v5, s37')
A('''s_lshl_b32 s37, s30, 2
s_add_u32 s37, s37, s34
s_lshl_b32 s37, s37, 5
s_lshr_b32 s38, s2, 3
s_add_u32 s37, s37, s38
s_lshl_b32 s37, s37, 9
s_add_u32 s37, s37, %d
v_and_b32 v6, 31, v0
v_lshl_add_u32 v3, v6, 4, s37
v_mov_b32 v59, s35''' % OP)
rd = 'ds_read_b128 v[8:11], v5 offset:%d\nds_read_b128 v[12:15], v5 offset:%d\n' % (ML, ML + 16)
rd += '\n'.join('ds_read_b128 %s, v4 offset:%d' % (vr(32 + 4 * w, 4), AP + 2048 * w) for w in range(4))
lds_wait(C_AT, 4, rd)
A('v_max3_f32 v16, v8, v10, v12\nv_max_f32 v16, v16, v14')
for w in range(4): A('v_sub_f32 v%d, v%d, v16' % (8 + 2 * w, 8 + 2 * w))
for w in range(4): A('v_exp_f32 v%d, v%d' % (8 + 2 * w, 8 + 2 * w))
A('v_mul_f32 v17, v8, v9\nv_fmac_f32 v17, v10, v11\nv_fmac_f32 v17, v12, v13\nv_fmac_f32 v17, v14, v15')
for k in range(4): A('v_mul_f32 v%d, v8, v%d' % (20 + k, 32 + k))
A('v_rcp_f32 v18, v17\nv_log_f32 v58, v17')
for w in range(1, 4):
    for k in range(4): A('v_fmac_f32 v%d, v%d, v%d' % (20 + k, 8 + 2 * w, 32 + 4 * w + k))
A('v_add_f32 v58, v58, v16')
for k in range(4): A('v_mul_f32 v%d, v%d, v18' % (20 + k, 20 + k))
A('v_cvt_pk_bf16_f32 v56, v20, v21\nv_cvt_pk_bf16_f32 v57, v22, v23')
A('s_mov_b32 exec_hi, 0\nglobal_store_dwordx4 v3, v[56:59], %s sc1\ns_mov_b32 exec_hi, -1' % sWS)
stamp(6)
A('''s_lshl_b32 s37, s30, 2
s_add_u32 s37, s37, s31
s_lshl_b32 s37, s37, 14
s_lshl_b32 s38, s34, 12
s_add_u32 s37, s37, s38
s_add_u32 s37, s37, %d
v_and_b32 v5, 7, v0
v_lshrrev_b32 v6, 4, v0
v_lshl_add_u32 v5, v6, 3, v5
v_lshl_add_u32 v3, v5, 4, s37
v_bfe_u32 v6, v0, 3, 1
v_lshl_add_u32 v3, v6, 11, v3
v_and_b32 v6, 15, v5
v_lshlrev_b32 v6, 4, v6
v_lshrrev_b32 v5, 4, v5
v_lshl_add_u32 v4, v5, 3, v6
s_mul_i32 s37, s34, %d
v_add_u32 v4, s37, v4''' % (OP, OS))
A('L_B_opoll:')
for s in range(4): A('global_load_dwordx4 %s, v3, %s offset:%d sc1' % (vr(32 + 4 * s, 4), sWS, s * 512))
A('s_waitcnt vmcnt(0)')
tagcheck([35, 39, 43, 47], 8, 'L_B_opoll')
stamp(7)
A('v_max3_f32 v16, v34, v38, v42\nv_max_f32 v16, v16, v46')
for s in range(4): unpack(64 + 4 * s, 32 + 4 * s, 1)
A('v_max_f32_dpp v16, v16, v16 row_ror:8 row_mask:0xf bank_mask:0xf')
for s in range(4): A('v_sub_f32 v%d, v%d, v16' % (8 + s, 34 + 4 * s))
for s in range(4): A('v_exp_f32 v%d, v%d' % (8 + s, 8 + s))
for s in range(4): unpack(66 + 4 * s, 33 + 4 * s, 1)
A('v_add_f32 v17, v8, v9\nv_add_f32 v18, v10, v11\nv_add_f32 v17, v17, v18')
for k in range(4): A('v_mul_f32 v%d, v8, v%d' % (20 + k, 64 + k))
A('v_add_f32_dpp v17, v17, v17 row_ror:8 row_mask:0xf bank_mask:0xf')
for s in range(1, 4):
    for k in range(4): A('v_fmac_f32 v%d, v%d, v%d' % (20 + k, 8 + s, 64 + 4 * s + k))
    if s == 1: A('v_rcp_f32 v18, v17')
for k in range(4): A('v_add_f32_dpp v%d, v%d, v%d row_ror:8 row_mask:0xf bank_mask:0xf' % (20 + k, 20 + k, 20 + k))
for k in range(4): A('v_mul_f32 v%d, v%d, v18' % (20 + k, 20 + k))
A('v_cvt_pk_bf16_f32 v24, v20, v21\nv_cvt_pk_bf16_f32 v25, v22, v23')
A('ds_write_b64 v4, v[24:25] offset:%d' % OL)
lds_signal(C_O)
stamp(8)
A('s_branch L_fin')

A('L_C:')
A('v_lshrrev_b32 v5, 3, v0\nv_and_b32 v6, 7, v0\nv_lshlrev_b32 v6, 4, v6\nv_lshl_add_u32 v3, v5, 13, v6')
A('s_lshl_b32 s38, s32, 7\ns_add_u32 s38, s38, 4096')
A('s_cmp_eq_u32 s3, 8\ns_cbranch_scc0 L_C_wo')
A('s_lshl_b32 s37, s33, 16\ns_add_u32 s37, s37, s38\nv_add_u32 v3, s37, v3')
A('s_waitcnt lgkmcnt(0)\ns_barrier')
A('s_cmp_ge_u32 s33, 28\ns_cbranch_scc1 L_fin')
stamp(1)
for t in range(8): A('global_load_dwordx4 %s, v3, %s offset:%d %s' % (vr(32 + 4 * t, 4), sW2, t * 1024 - 4096, POL))
stamp(2)
aop_addr(4, None, HS)
A('s_lshl_b32 s37, s32, 5\ns_add_u32 s37, s37, s33\ns_lshl_b32 s37, s37, 11\ns_add_u32 s37, s37, %d\nv_lshl_add_u32 v24, v0, 4, s37' % BP)
A('s_waitcnt vmcnt(0)')
stamp(3)
transpose(32, 96)
lds_wait(C_H, 4, 'ds_read_b128 v[8:11], v4 offset:%d\nds_read_b32 v17, v2 offset:%d' % (HL, C_TAG), sleep=1)
stamp(4)
unit_mfma(128, 8, 96, True)
A('v_mov_b32 v19, v17\nv_mov_b32 v21, v17\nv_mov_b32 v23, v17')
unit_fold(128, 16)
publish(16, 'v24')
stamp(5)
A('s_branch L_fin')
A('L_C_wo:')
A('''s_sub_u32 s39, s3, 9
s_lshl_b32 s37, s30, 2
s_add_u32 s37, s37, s31
s_lshl_b32 s37, s37, 1
s_add_u32 s42, s37, s39
s_lshl_b32 s37, s42, 16
s_add_u32 s37, s37, s38
v_add_u32 v3, s37, v3''')
A('s_waitcnt lgkmcnt(0)\ns_barrier')
stamp(1)
for t in range(8): A('global_load_dwordx4 %s, v3, %s offset:%d %s' % (vr(32 + 4 * t, 4), sWO, t * 1024 - 4096, POL))
stamp(2)
A('s_lshl_b32 s37, s39, 7')
aop_addr(4, 's37', OS)
A('s_lshl_b32 s37, s32, 6\ns_add_u32 s37, s37, s42\ns_lshl_b32 s37, s37, 11\ns_add_u32 s37, s37, %d\nv_lshl_add_u32 v24, v0, 4, s37' % SP)
A('s_waitcnt vmcnt(0)')
stamp(3)
transpose(32, 96)
lds_wait(C_O, 4, 'ds_read_b128 v[8:11], v4 offset:%d\nds_read_b32 v17, v2 offset:%d' % (OL, C_TAG))
stamp(4)
unit_mfma(128, 8, 96, True)
A('v_mov_b32 v19, v17\nv_mov_b32 v21, v17\nv_mov_b32 v23, v17')
unit_fold(128, 16)
publish(16, 'v24')
lds_signal(C_SPUB)
stamp(5)
A('L_fin:')
if ST and OPT.get('probe'):
    pw, pj, pk = [int(x) for x in OPT['probe'].split(',')]
    A('s_waitcnt lgkmcnt(0) vmcnt(0)')
    stamp(13)
    A('s_waitcnt lgkmcnt(0)')
    A('s_cmp_eq_u32 s3, %d\ns_cbranch_scc0 L_end' % pw)
    if OPT.get('probewg') is not None: A('s_cmp_eq_u32 s2, %d\ns_cbranch_scc0 L_end' % OPT['probewg'])
    if pk < 0:
        A('L_pr:\ns_memrealtime s[44:45]\ns_waitcnt lgkmcnt(0)\ns_sub_u32 s44, s44, s60\ns_cmp_lt_u32 s44, 3000\ns_cbranch_scc1 L_pr')
    else:
        A('s_sub_u32 s46, s%d, s62\ns_mul_i32 s46, s46, %d\ns_add_u32 s46, s46, 72000\ns_min_u32 s46, s46, 400000' % (62 + 2 * pj, pk))
        A('L_pr:\ns_memtime s[44:45]\ns_waitcnt lgkmcnt(0)\ns_sub_u32 s44, s44, s62\ns_cmp_lt_u32 s44, s46\ns_cbranch_scc1 L_pr')
elif ST:
    A('s_waitcnt lgkmcnt(0) vmcnt(0)')
    stamp(13)
    A('s_waitcnt lgkmcnt(0)')
    A('s_mul_i32 s37, s2, 11\ns_add_u32 s37, s37, s3\ns_lshl_b32 s37, s37, 7\ns_add_u32 s37, s37, 0x8000000\nv_mov_b32 v10, s37')
    for j in range(15):
        A('v_mov_b32 v4, s%d\nv_mov_b32 v5, s%d\nglobal_store_dwordx2 v10, v[4:5], %s offset:%d\ns_nop 1' % (60 + 2 * j, 61 + 2 * j, sWS, j * 8))
A('L_end:\ns_endpgm')

body = add_waits(L)
HDR = open('cdna_kernels/%s.s.ref' % NAME).read().split('; Override launch')[0]
k = NAME + '_kernel'
txt = HDR + '; @launch grid=(256,1,1) block=(704,1,1) lds=%d\n' % LDS_BYTES
txt += '.amdgcn_target "amdgcn-amd-amdhsa--gfx950"\n.text\n.globl %s\n.p2align 8\n.type %s,@function\n%s:\n' % (k, k, k)
txt += '\n'.join(('' if x.endswith(':') else '    ') + x for x in body)
txt += '\n.fill 2112, 4, 0xbf800000\n' if OPT['codepf'] else '\n'
txt += '''.section .rodata,"a"
.p2align 6
.amdhsa_kernel %s
  .amdhsa_next_free_vgpr 160
  .amdhsa_next_free_sgpr 96
  .amdhsa_accum_offset 160
  .amdhsa_group_segment_fixed_size 0
  .amdhsa_kernarg_size 104
  .amdhsa_user_sgpr_count 2
  .amdhsa_user_sgpr_kernarg_segment_ptr 1
  .amdhsa_system_sgpr_workgroup_id_x 1
  .amdhsa_float_denorm_mode_32 3
.end_amdhsa_kernel
''' % k
open(sys.argv[1], 'w').write(txt)
```

```python
import sys, os, struct, math
sys.path.insert(0, os.path.dirname(os.path.abspath(__file__)))
from asmlib import add_waits

NAME = 'recurrent_scan__sliding_block_cached__mixer_channel_mlp__decode'
OPT = dict(pol='nt', stamps=0, W=24, order='q1k2vo', qtrig=32, qstep=8, qdepth=3, pretouch=1, codepf=1, outsc1=0, z=1, rot=1, local=1, osleep=0, fsleep=0, otrig=0)
for a in sys.argv[2:]:
    k, v = a.split('='); OPT[k] = int(v) if v.lstrip('-').isdigit() else v
POL = OPT['pol'].replace('-', '').replace('+', ' ')
ST = OPT['stamps']; W = OPT['W']
NWAVE = 9

def fl(x): return '0x%08x' % struct.unpack('<I', struct.pack('<f', x))[0]

PAD = OPT.get('pad', 0)
QP, HP, OP, LOC, BP, SP = 0x040000, 0x080000, 0x0C0000, 0x100000, 0x240000, 0x2C0000
CNT = 0
C_XN, C_Y, C_Q, C_H, C_P, C_O, C_SP, C_TAG, C_OP = [CNT + 4 * k for k in range(9)]
PROG = 256
ML = 512
QL, QS = 640, 272
HL, HS = QL + 4 * QS, 144
OL, OS = HL + 4 * HS, 272
XN, XS = OL + 4 * OS, 1088
YL = XN + 4 * XS
PL = YL + 4 * XS
WQ = (PL + 4096 + 255) // 256 * 256
W1 = WQ + 16384
W2 = W1 + 8192
WO = W2 + 8192
KL, KS = WO + 16384, 1040
VL, VS = KL + 32 * KS, 1152
LDS_BYTES = VL + 32 * VS
assert WO + 16384 <= 65536 and LDS_BYTES <= 163840 and XN % 16 == 0 and PL % 16 == 0

L = []
def A(s):
    for x in s.split('\n'):
        x = x.strip()
        if x: L.append(x)
uid = [0]
def lab(p):
    uid[0] += 1; return 'L_%s%d' % (p, uid[0])

sX, sB1, sB2, sOUT, sWS = 's[4:5]', 's[18:19]', 's[22:23]', 's[24:25]', 's[28:29]'
XCD, IHI, ILO, FG, WV, TAG, CAP = 's30', 's31', 's32', 's33', 's34', 's35', 's36'
def stamp(k):
    if ST: A('s_memtime s[%d:%d]' % (66 + 2 * k, 67 + 2 * k))
def vr(b, n): return 'v[%d:%d]' % (b, b + n - 1)

def lds_signal(cnt):
    A('s_mov_b64 exec, 1\nds_add_u32 v2, v1 offset:%d\ns_mov_b64 exec, -1' % cnt)

def lds_wait(cnt, n, extra='', sleep=0):
    l = lab('w'); d = lab('d')
    A('%s:' % l)
    A('ds_read_b32 v7, v2 offset:%d' % cnt)
    if extra: A(extra)
    A('s_waitcnt lgkmcnt(0)\nv_readfirstlane_b32 s37, v7\ns_cmp_ge_u32 s37, %s\ns_cbranch_scc1 %s' % (n, d))
    if sleep: A('s_sleep %d' % sleep)
    A('s_sub_u32 %s, %s, 1\ns_cbranch_scc0 %s\n%s:' % (CAP, CAP, l, d))

def xrow(op, v, t):
    for sw in ('v_permlane16_swap_b32', 'v_permlane32_swap_b32'):
        A('v_mov_b32 v%d, v%d\n%s v%d, v%d\n%s v%d, v%d, v%d' % (t, v, sw, v, t, op, v, v, t))
def wave_sum(v, t):
    for r in (8, 4, 2, 1):
        A('v_add_f32_dpp v%d, v%d, v%d row_ror:%d row_mask:0xf bank_mask:0xf' % (v, v, v, r))
    xrow('v_add_f32', v, t)
def rbf(d, s):
    A('v_cvt_pk_bf16_f32 v%d, v%d, v%d\nv_lshlrev_b32 v%d, 16, v%d' % (d, s, s, d, d))
def unpack(dst, src, n):
    for k in range(n):
        A('v_lshlrev_b32 v%d, 16, v%d\nv_and_b32 v%d, 0xffff0000, v%d' % (dst + 2 * k, src + k, dst + 2 * k + 1, src + k))

def layernorm(P):
    F, Dd = 12, 20
    unpack(F, P, 4)
    A('v_add_f32 v28, v12, v13\nv_add_f32 v29, v14, v15\nv_add_f32 v30, v16, v17\nv_add_f32 v31, v18, v19')
    A('v_add_f32 v28, v28, v29\nv_add_f32 v30, v30, v31\nv_add_f32 v28, v28, v30')
    wave_sum(28, 29)
    A('v_mul_f32 v28, 0x3b000000, v28')
    for k in range(8): A('v_sub_f32 v%d, v%d, v28' % (Dd + k, F + k))
    A('v_mul_f32 v30, v20, v20\nv_mul_f32 v31, v21, v21')
    for k in range(2, 8): A('v_fmac_f32 v%d, v%d, v%d' % (30 + (k & 1), Dd + k, Dd + k))
    A('v_add_f32 v30, v30, v31')
    rbf(28, 28)
    wave_sum(30, 29)
    A('v_mul_f32 v30, 0x3b000000, v30')
    for k in range(8): A('v_sub_f32 v%d, v%d, v28' % (Dd + k, F + k))
    rbf(30, 30)
    A('v_add_f32 v30, 0x3727c5ac, v30')
    rbf(30, 30)
    A('v_sqrt_f32 v30, v30')
    for k in range(4): A('v_cvt_pk_bf16_f32 v%d, v%d, v%d' % (P + k, Dd + 2 * k, Dd + 2 * k + 1))
    rbf(30, 30)
    A('v_rcp_f32 v30, v30')
    unpack(F, P, 4)
    for k in range(8): A('v_mul_f32 v%d, v%d, v30' % (F + k, F + k))
    for k in range(4): A('v_cvt_pk_bf16_f32 v%d, v%d, v%d' % (P + k, F + 2 * k, F + 2 * k + 1))

def tag_consts():
    for k in range(4): A('s_mov_b32 s%d, 0x0706050%d' % (44 + k, k))
    A('s_mov_b32 s48, 0x0c0c0400\ns_mov_b32 s49, 0x04000c0c')
def tag_insert(dst, srcs, vtag):
    for k in range(4): A('v_perm_b32 v%d, v%d, v%d, s%d' % (dst + k, srcs[k], vtag, 44 + k))
def bytetag_diff(bases, t, stag):
    for n, b in enumerate(bases):
        A('v_perm_b32 v%d, v%d, v%d, s48\nv_perm_b32 v%d, v%d, v%d, s49' % (t + 2 * n, b + 1, b, t + 2 * n + 1, b + 3, b + 2))
    for n in range(len(bases)):
        A('v_bitop3_b32 v%d, v%d, v%d, %s bitop3:0x56' % (t + 2 * n, t + 2 * n, t + 2 * n + 1, stag))
    for n in range(1, len(bases)): A('v_or_b32 v%d, v%d, v%d' % (t, t, t + 2 * n))
def wordtag_diff(regs, t):
    n = 0
    for k in range(0, len(regs), 2):
        A('v_bitop3_b32 v%d, v%d, v%d, %s bitop3:0x7e' % (t + n, regs[k], regs[k + 1], TAG)); n += 1
    for k in range(1, n): A('v_or_b32 v%d, v%d, v%d' % (t, t, t + k))

def gather(loads, diff, t, cmp='v_cmp_ne_u32 vcc, 0, v%d', issued=False, firstwait=0, sleep=0, lp=None):
    lp = lp or lab('g'); chk = lab('c'); ok = lab('ok')
    if issued:
        A('s_waitcnt vmcnt(%d)\ns_branch %s' % (firstwait, chk))
    A('%s:' % lp)
    for x in loads: A(x)
    A('s_waitcnt vmcnt(0)')
    A('%s:' % chk)
    diff()
    A(cmp % t)
    A('s_cbranch_vccz %s\ns_mov_b64 exec, vcc' % ok)
    if sleep: A('s_sleep %d' % sleep)
    A('s_sub_u32 %s, %s, 1\ns_cbranch_scc0 %s\n%s:\ns_mov_b64 exec, -1' % (CAP, CAP, lp, ok))

def tr_reads(dst, vaddr, base, nks):
    return '\n'.join('ds_read_b64_tr_b16 %s, %s offset:%d' % (vr(dst + 4 * ks + 2 * hh, 2), vaddr, base + ks * 4096 + hh * 2048) for ks in range(nks) for hh in range(2))
def aop_reads(dst, vaddr, nks):
    return '\n'.join('ds_read2_b64 %s, %s offset0:%d offset1:%d' % (vr(dst + 4 * ks, 4), vaddr, ks * 8, ks * 8 + 4) for ks in range(nks))
def mfma(D, a, b, first):
    A('v_mfma_f32_16x16x32_bf16 %s, %s, %s, %s' % (vr(D, 4), vr(a, 4), vr(b, 4), '0' if first else vr(D, 4)))

def wtile_addr(v, ct):
    A('''v_lshrrev_b32 v5, 2, v0
v_bfe_u32 v6, v0, 3, 2
v_xor_b32 v6, %s, v6
v_lshlrev_b32 v6, 5, v6
v_lshl_add_u32 v5, v5, 7, v6
v_and_b32 v6, 3, v0
v_lshl_add_u32 v%d, v6, 3, v5''' % (ct, v))
def scatter4(b):
    A('v_permlane32_swap_b32 v%d, v%d\nv_permlane32_swap_b32 v%d, v%d' % (b, b + 1, b + 2, b + 3))
    A('v_add_f32 v%d, v%d, v%d\nv_add_f32 v%d, v%d, v%d' % (b, b, b + 1, b + 2, b + 2, b + 3))
    A('v_permlane16_swap_b32 v%d, v%d\nv_add_f32 v%d, v%d, v%d' % (b, b + 2, b, b, b + 2))

groups = {'q': 16, '1': 8, 'k': 32, 'v': 32, '2': 8, 'o': 16}
seq = []
spec = OPT['order']
toks = spec.split('.') if '.' in spec else list(spec)
used = dict.fromkeys(groups, 0)
for t in toks:
    g = t[0]; n = int(t[1:]) if len(t) > 1 else groups[g] - used[g]
    for j in range(n): seq.append((g, used[g])); used[g] += 1
assert used == groups
pos = {x: k + 1 for k, x in enumerate(seq)}
T_Q, T_1, T_2, T_O = pos[('q', 15)], pos[('1', 7)], pos[('2', 7)], pos[('o', 15)]
T_K = [pos[('k', 8 * w + 7)] for w in range(4)]
T_V = [pos[('v', 8 * w + 7)] for w in range(4)]
assert T_K == [T_K[0] + 8 * w for w in range(4)]
T_TRIG = [OPT['qtrig'] + OPT['qstep'] * k for k in range(OPT['qdepth'])]
early1 = True
signals = sorted(set([T_Q, T_1, T_2, T_O] + T_TRIG + T_K + T_V))

A('''s_load_dwordx2 s[40:41], s[0:1], 24
s_load_dwordx16 s[4:19], s[0:1], 0
s_load_dwordx8 s[20:27], s[0:1], 64
s_load_dwordx2 s[28:29], s[0:1], 96
v_lshrrev_b32 v1, 6, v0
s_cmp_ge_u32 s2, 256
s_cbranch_scc1 L_end''')
if ST: A('s_memrealtime s[64:65]'); stamp(0)
A('''v_readfirstlane_b32 s3, v1
v_and_b32 v0, 63, v0
s_and_b32 s30, s2, 7
s_lshr_b32 s31, s2, 6
s_bfe_u32 s32, s2, 0x30003
s_lshl3_add_u32 s33, s31, s30
v_mov_b32 v2, 0
s_cmp_eq_u32 s3, 0
s_cbranch_scc0 L_other''')
A('''v_lshrrev_b32 v5, 3, v0
v_and_b32 v6, 6, v5
v_and_b32 v7, 7, v0
v_xor_b32 v6, v6, v7
v_lshlrev_b32 v6, 4, v6
s_lshl_b32 s38, s32, 7
s_lshl_b32 s37, s31, 20
s_lshl_b32 s39, s30, 10
s_add_u32 s37, s37, s39
s_add_u32 s37, s37, s38
v_lshl_add_u32 v10, v5, 13, v6
v_add_u32 v10, s37, v10
s_mov_b32 s42, 0x400000
s_mov_b32 s43, 0x20000
v_lshlrev_b32 v3, 2, v0
ds_write2st64_b32 v3, v2, v2 offset0:0 offset1:1''')
setup = {}
setup['1'] = '''s_mov_b64 s[44:45], s[16:17]
s_cmp_lt_u32 s33, 28
s_cselect_b32 s46, 0x1c0000, 0
s_mov_b32 s47, 0x20000
s_lshl_b32 s37, s32, 6
v_add_u32 v11, s37, v5
v_mul_u32_u24 v11, 3584, v11
s_lshl_b32 s37, s33, 7
v_add3_u32 v11, v11, v6, s37'''
setup['k'] = '''s_mov_b64 s[48:49], s[6:7]
s_mov_b32 s50, 0x2000000
s_mov_b32 s51, 0x20000
s_lshl_b32 s37, s33, 20
s_lshl_b32 s39, s32, 15
s_add_u32 s37, s37, s39
s_add_u32 s37, s37, %d
v_lshrrev_b32 v7, 4, v0
v_and_b32 v8, 15, v0
v_lshlrev_b32 v9, 2, v7
v_xor_b32 v9, v9, v8
v_lshlrev_b32 v9, 4, v9
v_lshl_add_u32 v9, v7, 8, v9
v_add_u32 v12, s37, v9
v_lshlrev_b32 v9, 1, v7
v_xor_b32 v9, v9, v8
v_lshlrev_b32 v9, 4, v9
v_lshl_add_u32 v9, v7, 8, v9
v_add_u32 v13, s37, v9
s_lshr_b32 s35, s2, 3
s_lshl2_add_u32 s35, s30, s35
s_lshl_b32 s35, s35, 10''' % (3072 * 256) + ('' if OPT['rot'] else '\ns_mov_b32 s35, 0')
setup['v'] = 's_mov_b64 s[52:53], s[8:9]\ns_mov_b32 s54, 0x2000000\ns_mov_b32 s55, 0x20000'
setup['2'] = '''s_mov_b64 s[56:57], s[20:21]
s_mov_b32 s58, 0x1c0000
s_mov_b32 s59, 0x20000
s_lshl_b32 s37, s33, 16
s_add_u32 s37, s37, s38
v_lshl_add_u32 v14, v5, 10, v6
v_add_u32 v14, s37, v14'''
setup['o'] = '''s_mov_b64 s[60:61], s[12:13]
s_mov_b32 s62, 0x400000
s_mov_b32 s63, 0x20000
v_lshrrev_b32 v7, 2, v5
v_and_b32 v8, 1, v5
v_lshl_add_u32 v7, v8, 4, v7
v_bfe_u32 v8, v5, 1, 1
v_lshl_add_u32 v7, v8, 3, v7
v_lshl_add_u32 v15, v7, 10, v6
s_lshl2_add_u32 s37, s30, s31
s_lshl_b32 s37, s37, 17
s_add_u32 s37, s37, s38
v_add_u32 v15, s37, v15'''
def zf(j): return ((j % 8) * 4 + j // 8) if OPT['z'] else j
info = {'q': ('v10', 's[40:43]', WQ, 1024, lambda j: j * 65536), '1': ('v11', 's[44:47]', W1, 1024, lambda j: j * 8 * 3584),
        'k': ('v12', 's[48:51]', KL, KS, None), 'v': ('v13', 's[52:55]', VL, VS, None),
        '2': ('v14', 's[56:59]', W2, 1024, lambda j: j * 8192), 'o': ('v15', 's[60:63]', WO, 1024, lambda j: (j >> 2) * 32768 + (j & 3) * 2048)}
sent = set(); m0cur = None
stk = {T_Q: 2, T_1: 3, T_K[3]: 4, T_V[3]: 5, T_2: 6, T_O: 7}
def signal(done):
    best = None
    for s in signals:
        if s <= done and s not in sent:
            sent.add(s); best = s
            if s in stk: stamp(stk[s])
    if best is not None:
        A('v_mov_b32 v4, %d\nds_write_b32 v3, v4 offset:%d' % (done, PROG))
other_at = min(W, 16)
for k, (g, j) in enumerate(seq):
    v, srd, lb, ls, f = info[g]
    if j == 0 and g in setup: A(setup[g])
    m0 = lb + j * ls
    if m0cur is not None and -32768 <= m0 - m0cur < 32768: A('s_addk_i32 m0, %d' % (m0 - m0cur))
    else: A('s_mov_b32 m0, %d' % m0)
    m0cur = m0
    if f is None: A('s_add_u32 s36, s35, %d\ns_and_b32 s36, s36, 0x7fff' % (zf(j) * 1024))
    else: A('s_mov_b32 s36, %d' % f(j))
    if k == 0: A('s_waitcnt lgkmcnt(0)'); stamp(1)
    if k == W: A('s_barrier')
    if k >= W: A('s_waitcnt vmcnt(%d)' % (W - 1))
    A('buffer_load_dwordx4 %s, %s, s36 offen %s lds' % (v, srd, POL))
    if k >= W: signal(k - W + 1)
    if k == other_at - 1:
        A('s_branch L_ld_cont')
        A('''L_other:
s_sub_u32 s34, s3, 1
s_and_b32 s34, s34, 3
s_mov_b32 s36, 0x40000
v_mov_b32 v1, 1
v_lshlrev_b32 v3, 4, v0
s_getreg_b32 s50, hwreg(HW_REG_XCC_ID, 0, 4)
s_cmp_eq_u32 s50, s30
s_cselect_b32 s50, %d, 0
s_cmp_ge_u32 s3, 5
s_cbranch_scc1 L_B0
s_lshl_b32 s37, s34, 10
v_add_u32 v4, s37, v3
s_waitcnt lgkmcnt(0)
global_load_dwordx4 v[8:11], v4, %s
s_load_dword s35, %s, 0
s_branch L_A
L_B0:''' % (LOC if OPT['local'] else 0, sX, sWS))
        if OPT['codepf']:
            A('s_cmp_lt_u32 s34, 2\ns_cbranch_scc1 L_B\ns_getpc_b64 s[38:39]\ns_and_b32 s37, s34, 1\ns_lshl_b32 s37, s37, 13\nv_lshl_add_u32 v7, v0, 7, s37\nv_min_u32 v7, L_end - L_B0 - 128, v7\nglobal_load_dword v63, v7, s[38:39] offset:128')
        A('s_branch L_B')
        A('L_ld_cont:')
n = len(seq)
for s in signals:
    if s not in sent:
        A('s_waitcnt vmcnt(%d)' % (n - s)); signal(s)
A('s_branch L_fin')

A('L_A:')
stamp(1)
A('s_barrier')
A('s_mul_i32 s37, s34, %d\nv_add_u32 v4, s37, v3' % XS)
tag_consts()
A('''v_and_b32 v40, 15, v0
v_lshrrev_b32 v41, 4, v0
v_lshlrev_b32 v42, 4, v40
v_lshl_add_u32 v42, v41, 11, v42
s_lshl_b32 s37, s30, 15
s_lshl_b32 s38, s34, 13
s_add_u32 s37, s37, s38
s_lshl_b32 s38, s31, 8
s_add_u32 s37, s37, s38
s_add_u32 s37, s37, %d
s_add_u32 s37, s37, s50
v_add_u32 v64, s37, v42
s_min_u32 s39, s33, 27
s_lshl_b32 s37, s39, 13
s_lshl_b32 s38, s34, 8
s_add_u32 s37, s37, s38
s_add_u32 s37, s37, %d
s_add_u32 s37, s37, s50
v_add_u32 v65, s37, v42
s_cmp_ge_u32 s33, 28
s_cselect_b64 vcc, -1, 0
v_cndmask_b32 v65, v65, v64, vcc
v_lshrrev_b32 v5, 1, v41
v_and_b32 v6, 1, v41
v_lshl_add_u32 v66, v6, 4, v40
v_lshl_add_u32 v66, v5, 6, v66
s_mul_i32 s37, s34, %d
v_lshl_add_u32 v66, v66, 1, s37
v_lshl_add_u32 v43, v6, 1, v5
v_lshl_add_u32 v67, v43, 4, v40
v_lshlrev_b32 v67, 1, v67
s_lshl_b32 s37, s39, 7
v_add_u32 v5, s37, v67
global_load_ushort v45, v5, %s
s_mul_i32 s37, s34, %d
v_add_u32 v67, s37, v67''' % (QP, HP, QS, sB1, HS))
wtile_addr(68, WV)
A('v_and_b32 v5, 3, v0\nv_mul_u32_u24 v69, %d, v5\nv_lshl_add_u32 v69, v41, 3, v69\nv_add_u32 v69, %d, v69' % (HS, HL))
A('''v_lshlrev_b32 v70, 4, v5
v_lshl_add_u32 v70, v41, %d, v70
s_lshl_b32 s37, s32, 5
s_add_u32 s37, s37, s33
s_lshl2_add_u32 s37, s37, s34
s_lshl_b32 s37, s37, %d
s_add_u32 s37, s37, %d
v_add_u32 v70, s37, v70''' % (6 + PAD, 8 + PAD, BP))
A('''s_lshl2_add_u32 s37, s30, s31
s_lshr_b32 s38, s37, 1
s_lshl_b32 s38, s38, %d
s_and_b32 s39, s37, 1
s_lshl_b32 s39, s39, 5
s_add_u32 s38, s38, s39
s_lshl_b32 s39, s32, %d
s_add_u32 s38, s38, s39
v_and_b32 v5, 1, v0
v_lshl_add_u32 v6, v5, 4, s38
v_lshrrev_b32 v7, 1, v0
v_lshl_add_u32 v73, v7, %d, v6
v_add_u32 v73, %d, v73
v_min_u32 v7, 27, v7
v_lshl_add_u32 v72, v7, %d, v6
v_add_u32 v72, %d, v72
s_lshr_b32 s38, s37, 1
s_lshl_b32 s38, s38, 3
s_lshl_b32 s39, s32, 7
s_add_u32 s38, s38, s39
v_lshl_add_u32 v74, v43, 1, s38
s_and_b32 s38, s37, 1
s_lshl_b32 s38, s38, 11
v_lshl_add_u32 v75, v5, 10, s38
v_add_u32 v75, v75, v74
s_cmp_eq_u32 s34, 3
s_cbranch_scc0 L_A_nf
global_load_ushort v76, v74, %s
global_load_ushort v77, v75, %s''' % (6 + PAD, 15 + PAD, 10 + PAD, SP, 10 + PAD, BP, sB2, sX))
if OPT['pretouch']: A('global_load_ushort v78, v75, %s' % sOUT)
NPRE = 3 + OPT['pretouch']
if OPT.get('spre', 0) & 1: A('global_load_dword v79, v73, %s %s' % (sWS, OPT.get('sprepol', '').replace('+', ' '))); NPRE += 1
if OPT.get('spre', 0) & 2: A('global_load_dword v79, v72, %s %s' % (sWS, OPT.get('sprepol', '').replace('+', ' '))); NPRE += 1
A('s_waitcnt vmcnt(%d)\ns_branch L_A_go\nL_A_nf:\ns_waitcnt vmcnt(1)\nL_A_go:' % NPRE)
A('s_mov_b32 s51, 0')
stamp(2)
A('L_A_ln:')
layernorm(8)
A('ds_write_b128 v4, v[8:11] offset:%d' % XN)
A('s_cmp_eq_u32 s51, 0\ns_cbranch_scc0 L_A_ln2')
A('s_waitcnt lgkmcnt(0)\ns_mul_i32 s35, s35, 0x9E3779B1\ns_add_u32 s35, s35, 0x7F4A7C15')
A('v_mov_b32 v47, s35\ns_mov_b64 exec, 1\nds_write_b32 v2, v47 offset:%d\nds_add_u32 v2, v1 offset:%d\ns_mov_b64 exec, -1' % (C_TAG, C_XN))
A('v_add_u32 v4, %d, v4\ns_mov_b32 s51, 1\ns_branch L_A_ln' % (YL - XN))
A('L_A_ln2:')
lds_signal(C_Y)
stamp(3)
qloads = ['global_load_dwordx4 %s, v64, %s offset:%d sc1' % (vr(48 + 4 * r, 4), sWS, r * 1024) for r in range(2)]
hloads = ['global_load_dwordx4 %s, v65, %s offset:%d sc1' % (vr(56 + 4 * r, 4), sWS, r * 1024) for r in range(2)]
QD = OPT['qdepth']
def qissue(k):
    for r in range(2): A('global_load_dwordx4 %s, v64, %s offset:%d sc1' % (vr(80 + 8 * k + 4 * r, 4), sWS, r * 1024))
for k in range(QD):
    lds_wait(PROG, T_TRIG[k], sleep=1)
    if k == 0: stamp(6)
    if k == QD - 1 and OPT.get('hearly', 1):
        for x in hloads: A(x)
    qissue(k)
if OPT.get('hearly', 1):
    for k in range(QD - 1):
        A('s_waitcnt vmcnt(%d)' % (2 * QD))
        bytetag_diff([80 + 8 * k, 84 + 8 * k], 12, TAG)
        for j in range(4): A('v_add_f32 v%d, v%d, v%d' % (48 + j, 80 + 8 * k + j, 84 + 8 * k + j))
        A('v_cmp_ne_u32 vcc, 0, v12\ns_cbranch_vccz L_A_qok')
        qissue(k)
    A('s_branch L_A_qlast')
A('L_A_qloop:')
for k in range(QD):
    if k == QD - 1: A('L_A_qlast:')
    A('s_waitcnt vmcnt(%d)' % (2 * (QD - 1)))
    bytetag_diff([80 + 8 * k, 84 + 8 * k], 12, TAG)
    for j in range(4): A('v_add_f32 v%d, v%d, v%d' % (48 + j, 80 + 8 * k + j, 84 + 8 * k + j))
    A('v_cmp_ne_u32 vcc, 0, v12\ns_cbranch_vccz L_A_qok')
    qissue(k)
A('s_sub_u32 %s, %s, 1\ns_cbranch_scc0 L_A_qloop\nL_A_qok:' % (CAP, CAP))
A('v_permlane16_swap_b32 v48, v49\nv_permlane16_swap_b32 v50, v51\nv_add_f32 v48, v48, v49\nv_add_f32 v50, v50, v51')
A('v_cvt_pk_bf16_f32 v48, v48, v50\nds_write_b16 v66, v48 offset:%d\nds_write_b16_d16_hi v66, v48 offset:%d' % (QL, QL + 64))
lds_signal(C_Q)
stamp(7)
A('s_cmp_ge_u32 s33, 28\ns_cbranch_scc1 L_A_mlpdone')
gather(hloads, lambda: bytetag_diff([56, 60], 12, TAG), 12, issued=bool(OPT.get('hearly', 1)))
for k in range(4): A('v_add_f32 v%d, v%d, v%d' % (56 + k, 56 + k, 60 + k))
scatter4(56)
rbf(8, 56)
A('v_lshlrev_b32 v9, 16, v45\nv_add_f32 v8, v8, v9')
rbf(8, 8)
c1 = -2.0 * math.sqrt(2.0 / math.pi) * math.log2(math.e)
A('v_mul_f32 v9, v8, v8\nv_mov_b32 v10, %s\nv_fmac_f32 v10, %s, v9\nv_mul_f32 v10, v10, v8' % (fl(c1), fl(c1 * 0.044715)))
A('v_exp_f32 v10, v10\nv_add_f32 v10, 1.0, v10\nv_rcp_f32 v10, v10\nv_mul_f32 v8, v8, v10')
A('v_cvt_pk_bf16_f32 v8, v8, v8\nds_write_b16 v67, v8 offset:%d' % HL)
lds_signal(C_H)
stamp(8)
lds_wait(PROG, T_2, sleep=1)
A(tr_reads(48, 'v68', W2, 2))
lds_wait(C_H, 4, aop_reads(8, 'v69', 2))
for ks in range(2): mfma(56, 48 + 4 * ks, 8 + 4 * ks, ks == 0)
tag_insert(60, [56, 57, 58, 59], 47)
A('s_mov_b32 exec_lo, 0x000f000f\ns_mov_b32 exec_hi, 0x000f000f\nglobal_store_dwordx4 v70, v[60:63], %s sc1\ns_mov_b64 exec, -1' % sWS)
A('L_A_mlpdone:')
stamp(9)
A('s_cmp_eq_u32 s34, 3\ns_cbranch_scc0 L_fin')
lds_wait(PROG, T_O, sleep=1)
lds_wait(C_O, 4)
gather(['global_load_dwordx4 v[32:35], v72, %s sc1' % sWS], lambda: bytetag_diff([32], 12, TAG), 12, sleep=OPT['fsleep'])
stamp(10)
def red32(b):
    scatter4(b)
    A('v_add_f32_dpp v%d, v%d, v%d row_ror:8 row_mask:0xf bank_mask:0xf' % (b, b, b))
    A('v_add_f32_dpp v%d, v%d, v%d row_ror:4 row_mask:0xf bank_mask:0xf' % (b, b, b))
    A('v_add_f32_dpp v%d, v%d, v%d quad_perm:[2,3,0,1] row_mask:0xf bank_mask:0xf' % (b, b, b))
A('s_mov_b32 exec_lo, 0\ns_mov_b32 exec_hi, 0xff000000\nv_mov_b32 v32, 0\nv_mov_b32 v33, 0\nv_mov_b32 v34, 0\nv_mov_b32 v35, 0\ns_mov_b64 exec, -1')
red32(32)
rbf(8, 32)
A('v_lshlrev_b32 v9, 16, v76\nv_add_f32 v8, v8, v9')
rbf(8, 8)
A('v_mul_f32 v10, %s, v8\nv_exp_f32 v10, v10\nv_add_f32 v10, 1.0, v10\nv_rcp_f32 v10, v10\nv_mul_f32 v8, v8, v10' % fl(-math.log2(math.e)))
rbf(16, 8)
A('v_lshlrev_b32 v17, 16, v77')
lds_wait(C_SP, 4)
gather(['global_load_dwordx4 v[32:35], v73, %s sc1' % sWS], lambda: bytetag_diff([32], 12, TAG), 12, sleep=OPT['fsleep'])
stamp(11)
red32(32)
rbf(8, 32)
A('v_mul_f32 v8, v8, v16')
rbf(8, 8)
A('v_add_f32 v8, v8, v17\nv_cvt_pk_bf16_f32 v8, v8, v8')
A('s_mov_b32 exec_lo, 0x00030003\ns_mov_b32 exec_hi, 0x00030003\nglobal_store_short v75, v8, %s %s' % (sOUT, 'sc1' if OPT['outsc1'] else ''))
A('s_cmp_eq_u32 s2, 0\ns_cbranch_scc0 L_F_done')
A('s_mov_b64 exec, 1\nglobal_store_dword v2, v47, %s %s' % (sWS, 'sc1' if OPT['outsc1'] else ''))
A('L_F_done:\ns_mov_b64 exec, -1')
stamp(12)
A('s_branch L_fin')

A('L_B:')
stamp(1)
A('s_barrier')
tag_consts()
wtile_addr(53, WV)
A('v_lshrrev_b32 v4, 4, v0')
A('''s_lshl_b32 s37, s30, 7
s_lshr_b32 s38, s2, 3
s_add_u32 s37, s37, s38
s_lshl_b32 s37, s37, 9
s_lshl_b32 s38, s34, 7
s_add_u32 s37, s37, s38
s_add_u32 s37, s37, %d
v_and_b32 v7, 7, v0
v_lshlrev_b32 v7, 4, v7
v_lshl_add_u32 v7, v4, 14, v7
v_add_u32 v50, s37, v7
v_add_u32 v62, %d, v50''' % (OP, LOC))
A('s_waitcnt lgkmcnt(0)')
def pub2(vg, vl, data):
    if OPT['local']:
        l1 = lab('p'); l2 = lab('p')
        A('s_cmp_eq_u32 s50, 0\ns_cbranch_scc1 %s\nglobal_store_dwordx4 %s, %s, %s\ns_branch %s\n%s:\nglobal_store_dwordx4 %s, %s, %s sc1\n%s:' % (l1, vl, data, sWS, l2, l1, vl, data, sWS, l2))
    A('global_store_dwordx4 %s, %s, %s sc1' % (vg, data, sWS))
def predirty(vl, mask=None):
    if OPT['local'] and OPT.get('predirty', 1):
        l1 = lab('p')
        A('s_cmp_eq_u32 s50, 0\ns_cbranch_scc1 %s' % l1)
        if mask: A('s_mov_b32 exec_lo, %s\ns_mov_b32 exec_hi, %s' % (mask, mask))
        A('global_store_dwordx4 %s, v[56:59], %s' % (vl, sWS))
        if mask: A('s_mov_b64 exec, -1')
        A('%s:' % l1)
A('v_mov_b32 v56, 0\nv_mov_b32 v57, 0\nv_mov_b32 v58, 0\nv_mov_b32 v59, 0')
predirty('v62', '0x00ff00ff')
A('s_cmp_ge_u32 s34, 2\ns_cbranch_scc1 L_B_att')
A('v_bfe_u32 v5, v0, 2, 2\nv_mul_u32_u24 v5, %d, v5\nv_lshl_add_u32 v44, v4, 3, v5' % XS)
A('s_lshl_b32 s37, s34, 5\nv_xor_b32 v40, s37, v53\nv_xor_b32 v41, 32, v40\nv_xor_b32 v42, 64, v40\nv_xor_b32 v43, 32, v42')
A('s_cmp_eq_u32 s34, 0\ns_cbranch_scc0 L_B_h')
A('s_lshl_b32 s37, s31, 8\ns_add_u32 s37, s37, %d\nv_add_u32 v44, s37, v44' % XN)
A('s_lshl3_add_u32 s37, s30, s32\ns_lshl2_add_u32 s37, s37, s31\ns_lshl_b32 s37, s37, 10\ns_add_u32 s37, s37, %d\nv_add_u32 v45, s37, v3' % QP)
A('v_add_u32 v47, %d, v45' % LOC)
predirty('v47')
lds_wait(C_XN, 4, aop_reads(8, 'v44', 4) + '\nds_read_b32 v46, v2 offset:%d' % C_TAG, sleep=1)
lds_wait(PROG, T_Q)
stamp(11)
for ct in range(4): A(tr_reads(64 + 16 * ct, 'v%d' % (40 + ct), WQ, 4))
for ct in range(4):
    A('s_waitcnt lgkmcnt(%d)' % (0 if ST else min(15, 24 - 8 * ct)))
    for ks in range(4): mfma(24 + 4 * ct, 8 + 4 * ks, 64 + 16 * ct + 4 * ks, ks == 0)
A('s_branch L_B_pub')
A('L_B_h:')
A('s_cmp_ge_u32 s33, 28\ns_cbranch_scc1 L_B_att')
A('s_lshl_b32 s37, s32, 7\ns_add_u32 s37, s37, %d\nv_add_u32 v44, s37, v44' % YL)
A('s_lshl3_add_u32 s37, s33, s32\ns_lshl_b32 s37, s37, 10\ns_add_u32 s37, s37, %d\nv_add_u32 v45, s37, v3' % HP)
A('v_add_u32 v47, %d, v45' % LOC)
predirty('v47')
def hpart():
    lds_wait(C_Y, 4, aop_reads(8, 'v44', 2) + '\nds_read_b32 v46, v2 offset:%d' % C_TAG, sleep=1)
    lds_wait(PROG, T_1)
    stamp(11)
    for ct in range(4): A(tr_reads(64 + 16 * ct, 'v%d' % (40 + ct), W1, 2))
    A('s_waitcnt lgkmcnt(0)')
    for ct in range(4):
        for ks in range(2): mfma(24 + 4 * ct, 8 + 4 * ks, 64 + 16 * ct + 4 * ks, ks == 0)
assert early1, 'late w1 not supported in this version'
hpart()
A('L_B_pub:')
A('s_nop 7')
tag_insert(8, [24, 28, 32, 36], 46)
pub2('v45', 'v47', 'v[8:11]')
stamp(12)
A('L_B_att:')
A('''v_bfe_u32 v5, v0, 2, 2
v_mul_u32_u24 v8, %d, v5
v_and_b32 v6, 3, v0
v_lshl_add_u32 v8, v6, 8, v8
v_lshl_add_u32 v8, v4, 4, v8
s_mul_i32 s37, s34, %d
s_add_u32 s37, s37, %d
v_add_u32 v8, s37, v8''' % (KS, 8 * KS, KL))
for st in range(4): A('v_xor_b32 v7, %d, v6\nv_lshl_add_u32 v%d, v7, 6, v8' % (st, 40 + st))
A('v_mul_u32_u24 v44, %d, v5\nv_lshl_add_u32 v44, v4, 4, v44' % QS)
A('''v_mul_u32_u24 v7, %d, v4
v_lshl_add_u32 v7, v5, 8, v7
v_lshl_add_u32 v7, v6, 3, v7
v_add_u32 v7, %d, v7
s_lshl_b32 s37, s34, 1
v_xor_b32 v8, s37, v5
v_lshl_add_u32 v45, v8, 5, v7
v_xor_b32 v8, 1, v8
v_lshl_add_u32 v46, v8, 5, v7''' % (VS, VL))
A('v_lshlrev_b32 v48, 5, v4\ns_lshl_b32 s37, s34, 3\nv_add_u32 v47, s37, v48')
A('s_lshl_b32 s37, s34, 10\nv_add_u32 v49, s37, v3')
A('''s_lshl2_add_u32 s37, s30, s31
s_lshl_b32 s37, s37, 14
s_lshl_b32 s38, s34, 12
s_add_u32 s37, s37, s38
s_add_u32 s37, s37, %d
s_add_u32 s37, s37, s50
v_and_b32 v7, 7, v0
v_lshl_add_u32 v7, v4, 3, v7
v_lshl_add_u32 v51, v7, 4, s37
v_bfe_u32 v8, v0, 3, 1
v_lshl_add_u32 v51, v8, 11, v51
s_mul_i32 s37, s34, %d
v_lshl_add_u32 v52, v7, 3, s37''' % (OP, OS))
A('v_mul_u32_u24 v54, %d, v6\nv_lshl_add_u32 v54, v4, 3, v54\nv_add_u32 v54, %d, v54' % (OS, OL))
A('''v_lshlrev_b32 v55, 4, v6
v_lshl_add_u32 v55, v4, %d, v55
s_lshl2_add_u32 s37, s30, s31
s_lshl_b32 s38, s32, 5
s_add_u32 s37, s37, s38
s_lshl2_add_u32 s37, s37, s34
s_lshl_b32 s37, s37, %d
s_add_u32 s37, s37, %d
v_add_u32 v55, s37, v55''' % (6 + PAD, 8 + PAD, SP))
A('v_mov_b32 v28, 0x3f803f80\nv_mov_b32 v29, v28\nv_mov_b32 v30, v28\nv_mov_b32 v31, v28')
CS = (128 ** -0.5) * math.log2(math.e)
A('s_mov_b32 s42, %s' % fl(CS))
A('s_lshl3_add_u32 s43, s34, %d' % T_K[0])
lds_wait(PROG, 's43', sleep=2)
stamp(2)
for tau in range(2):
    for st in range(4): A('ds_read_b128 %s, v%d offset:%d' % (vr(64 + 16 * tau + 4 * st, 4), 40 + st, tau * 4 * KS))
lds_wait(C_Q, 4, '\n'.join('ds_read_b128 %s, v44 offset:%d' % (vr(96 + 4 * st, 4), QL + 64 * st) for st in range(4)) + '\nds_read_b32 v59, v2 offset:%d' % C_TAG)
stamp(3)
for st in range(4):
    for tau in range(2): mfma(16 + 4 * tau, 64 + 16 * tau + 4 * st, 96 + 4 * st, st == 0)
A('v_readfirstlane_b32 s35, v59')
A('v_max3_f32 v24, v16, v17, v18\nv_max3_f32 v25, v19, v20, v21\nv_max3_f32 v24, v24, v22, v23\nv_max_f32 v24, v24, v25')
xrow('v_max_f32', 24, 25)
A('v_mul_f32 v24, s42, v24')
for i in range(8): A('v_fma_f32 v%d, v%d, s42, -v24' % (16 + i, 16 + i))
for i in range(8): A('v_exp_f32 v%d, v%d' % (16 + i, 16 + i))
for k in range(4): A('v_cvt_pk_bf16_f32 v%d, v%d, v%d' % (8 + k, 16 + 2 * k, 17 + 2 * k))
mfma(12, 8, 28, True)
A('ds_write_b128 v49, v[8:11] offset:%d' % PL)
A('v_mov_b32 v25, v12')
A('s_mov_b32 exec_lo, 0x00100001\ns_mov_b32 exec_hi, 0x10000100\nds_write_b64 v47, v[24:25] offset:%d' % ML)
lds_signal(C_P)
stamp(4)
rd = 'ds_read_b128 v[8:11], v48 offset:%d\nds_read_b128 v[12:15], v48 offset:%d\n' % (ML, ML + 16)
rd += '\n'.join('ds_read_b128 %s, v3 offset:%d' % (vr(64 + 4 * w, 4), PL + 1024 * w) for w in range(4))
lds_wait(C_P, 4, rd)
A('v_max3_f32 v16, v8, v10, v12\nv_max_f32 v16, v16, v14')
for w in range(4): A('v_sub_f32 v%d, v%d, v16' % (8 + 2 * w, 8 + 2 * w))
for w in range(4): A('v_exp_f32 v%d, v%d' % (8 + 2 * w, 8 + 2 * w))
A('v_mul_f32 v17, v8, v9\nv_fmac_f32 v17, v10, v11\nv_fmac_f32 v17, v12, v13\nv_fmac_f32 v17, v14, v15')
A('v_rcp_f32 v18, v17\nv_log_f32 v58, v17')
for w in range(4): A('v_mul_f32 v%d, v%d, v18' % (8 + 2 * w, 8 + 2 * w))
A('v_add_f32 v58, v58, v16')
stamp(5)
def vreads(kss): return '\n'.join('ds_read_b64_tr_b16 %s, v%d offset:%d' % (vr(80 + 8 * ks + 4 * a + 2 * hh, 2), 45 + a, (ks * 8 + hh * 4) * VS) for ks in kss for a in range(2) for hh in range(2))
lds_wait(PROG, T_V[2])
A(vreads([0, 1, 2])); A('s_waitcnt lgkmcnt(0)')
DV = [112, 120, 32]
for ks in range(3):
    for a in range(2): mfma(DV[ks] + 4 * a, 64 + 4 * ks, 80 + 8 * ks + 4 * a, True)
for ks in range(3):
    for a in range(2):
        if ks == 0: A('v_mul_f32 v%d, v8, v%d' % (20 + a, DV[0] + 4 * a))
        else: A('v_fmac_f32 v%d, v%d, v%d' % (20 + a, 8 + 2 * ks, DV[ks] + 4 * a))
lds_wait(PROG, T_V[3], vreads([3]))
stamp(6)
for a in range(2): mfma(112 + 4 * a, 76, 104 + 4 * a, True)
for a in range(2): A('v_fmac_f32 v%d, v14, v%d' % (20 + a, 112 + 4 * a))
A('v_cvt_pk_bf16_f32 v56, v20, v21')
A('v_mov_b32_dpp v57, v56 row_ror:8 row_mask:0xf bank_mask:0xf')
A('s_mov_b32 exec_lo, 0x00ff00ff\ns_mov_b32 exec_hi, 0x00ff00ff')
if OPT['local']:
    A('s_cmp_eq_u32 s50, 0\ns_cbranch_scc1 L_B_far\nglobal_store_dwordx4 v62, v[56:59], %s\ns_branch L_B_pubd\nL_B_far:\nglobal_store_dwordx4 v62, v[56:59], %s sc1' % (sWS, sWS))
A('global_store_dwordx4 v50, v[56:59], %s sc1\nL_B_pubd:\ns_mov_b64 exec, -1' % sWS)
stamp(7)
oloads = ['global_load_dwordx4 %s, v51, %s offset:%d sc1' % (vr(64 + 4 * s, 4), sWS, s * 512) for s in range(4)]
if OPT.get('osync', 1):
    lds_signal(C_OP); lds_wait(C_OP, 4)
for x in oloads: A(x)
lds_wait(PROG, T_O)
A(tr_reads(96, 'v53', WO, 4))
if OPT.get('omask', 1):
    A('L_B_og:\ns_waitcnt vmcnt(0)')
    for k in range(4): A('v_cmp_ne_u32 s[%d:%d], s35, v%d' % (52 + 2 * k, 53 + 2 * k, 67 + 4 * k))
    A('s_or_b64 s[60:61], s[52:53], s[54:55]\ns_or_b64 s[62:63], s[56:57], s[58:59]\ns_or_b64 s[60:61], s[60:61], s[62:63]\ns_cbranch_scc0 L_B_ogd')
    if OPT['osleep']: A('s_sleep %d' % OPT['osleep'])
    for k in range(4): A('s_mov_b64 exec, s[%d:%d]\n%s' % (52 + 2 * k, 53 + 2 * k, oloads[k]))
    A('s_mov_b64 exec, -1\ns_sub_u32 %s, %s, 1\ns_cbranch_scc0 L_B_og\nL_B_ogd:' % (CAP, CAP))
else:
    gather(oloads, lambda: wordtag_diff([67, 71, 75, 79], 12), 12, sleep=OPT['osleep'], issued=True)
stamp(8)
A('v_max3_f32 v16, v66, v70, v74\nv_max_f32 v16, v16, v78')
for s in range(4): unpack(80 + 4 * s, 64 + 4 * s, 1)
A('v_max_f32_dpp v16, v16, v16 row_ror:8 row_mask:0xf bank_mask:0xf')
for s in range(4): A('v_sub_f32 v%d, v%d, v16' % (8 + s, 66 + 4 * s))
for s in range(4): A('v_exp_f32 v%d, v%d' % (8 + s, 8 + s))
for s in range(4): unpack(82 + 4 * s, 65 + 4 * s, 1)
A('v_add_f32 v17, v8, v9\nv_add_f32 v18, v10, v11\nv_add_f32 v17, v17, v18')
for k in range(4): A('v_mul_f32 v%d, v8, v%d' % (20 + k, 80 + k))
A('v_add_f32_dpp v17, v17, v17 row_ror:8 row_mask:0xf bank_mask:0xf')
for s in range(1, 4):
    for k in range(4): A('v_fmac_f32 v%d, v%d, v%d' % (20 + k, 8 + s, 80 + 4 * s + k))
    if s == 1: A('v_rcp_f32 v18, v17')
for k in range(4): A('v_add_f32_dpp v%d, v%d, v%d row_ror:8 row_mask:0xf bank_mask:0xf' % (20 + k, 20 + k, 20 + k))
for k in range(4): A('v_mul_f32 v%d, v%d, v18' % (20 + k, 20 + k))
A('v_cvt_pk_bf16_f32 v24, v20, v21\nv_cvt_pk_bf16_f32 v25, v22, v23')
A('ds_write_b64 v52, v[24:25] offset:%d' % OL)
lds_signal(C_O)
stamp(9)
lds_wait(C_O, 4, aop_reads(64, 'v54', 4))
for ks in range(4): mfma(112, 96 + 4 * ks, 64 + 4 * ks, ks == 0)
tag_insert(8, [112, 113, 114, 115], 59)
A('s_mov_b32 exec_lo, 0x000f000f\ns_mov_b32 exec_hi, 0x000f000f\nglobal_store_dwordx4 v55, v[8:11], %s sc1' % sWS)
lds_signal(C_SP)
if OPT['local']:
    A('s_mov_b32 exec_lo, 0x00ff00ff\ns_mov_b32 exec_hi, 0x00ff00ff\nglobal_store_dwordx4 v50, v[56:59], %s sc1\ns_mov_b64 exec, -1' % sWS)
stamp(10)
A('L_fin:')
if ST and OPT.get('probe'):
    pw, pj, pk = [int(x) for x in OPT['probe'].split(',')]
    A('s_waitcnt lgkmcnt(0) vmcnt(0)')
    stamp(13)
    A('s_waitcnt lgkmcnt(0)')
    A('s_cmp_eq_u32 s3, %d\ns_cbranch_scc0 L_end' % pw)
    if OPT.get('probex') is not None: A('s_cmp_eq_u32 s30, %d\ns_cbranch_scc0 L_end' % OPT['probex'])
    if pk < 0:
        A('L_pr:\ns_memrealtime s[38:39]\ns_waitcnt lgkmcnt(0)\ns_sub_u32 s38, s38, s64\ns_cmp_lt_u32 s38, 3000\ns_cbranch_scc1 L_pr')
    else:
        A('s_sub_u32 s37, s%d, s66\ns_mul_i32 s37, s37, %d\ns_add_u32 s37, s37, 72000\ns_min_u32 s37, s37, 400000' % (66 + 2 * pj, pk))
        A('L_pr:\ns_memtime s[38:39]\ns_waitcnt lgkmcnt(0)\ns_sub_u32 s38, s38, s66\ns_cmp_lt_u32 s38, s37\ns_cbranch_scc1 L_pr')
elif ST:
    A('s_waitcnt lgkmcnt(0) vmcnt(0)')
    stamp(13)
    A('s_waitcnt lgkmcnt(0)')
    A('s_mul_i32 s37, s2, %d\ns_add_u32 s37, s37, s3\ns_lshl_b32 s37, s37, 7\ns_add_u32 s37, s37, 0x8000000\nv_mov_b32 v10, s37' % NWAVE)
    for j in range(15):
        A('v_mov_b32 v4, s%d\nv_mov_b32 v5, s%d\nglobal_store_dwordx2 v10, v[4:5], %s offset:%d\ns_nop 1' % (64 + 2 * j, 65 + 2 * j, sWS, j * 8))
A('L_end:\ns_endpgm')

body = add_waits(L)
HDR = open('cdna_kernels/%s.s.ref' % NAME).read().split('; Override launch')[0]
k = NAME + '_kernel'
txt = HDR + '; @launch grid=(256,1,1) block=(%d,1,1) lds=%d\n' % (64 * NWAVE, LDS_BYTES)
txt += '.amdgcn_target "amdgcn-amd-amdhsa--gfx950"\n.text\n.globl %s\n.p2align 8\n.type %s,@function\n%s:\n' % (k, k, k)
txt += '\n'.join(('' if x.endswith(':') else '    ') + x for x in body)
txt += '\n.fill 64, 4, 0xbf800000\n'
txt += '''.section .rodata,"a"
.p2align 6
.amdhsa_kernel %s
  .amdhsa_next_free_vgpr 128
  .amdhsa_next_free_sgpr 96
  .amdhsa_accum_offset 128
  .amdhsa_group_segment_fixed_size 0
  .amdhsa_kernarg_size 104
  .amdhsa_user_sgpr_count 2
  .amdhsa_user_sgpr_kernarg_segment_ptr 1
  .amdhsa_system_sgpr_workgroup_id_x 1
  .amdhsa_float_denorm_mode_32 3
.end_amdhsa_kernel
''' % k
open(sys.argv[1], 'w').write(txt)
```
